```python
import torch

def _softmax(x, axis=-1):
    return torch.softmax(x, dim=axis)
def _gelu(x):
    return torch.nn.functional.gelu(x, approximate="tanh")
def _silu(x):
    return torch.nn.functional.silu(x)
def _sigmoid(x):
    return torch.sigmoid(x)
def _layernorm(x, axis=-1, eps=1e-5):
    m = x.mean(dim=axis, keepdim=True)
    v = x.var(dim=axis, keepdim=True, unbiased=False)
    return (x - m) / torch.sqrt(v + eps)
def _scatter_add(tgt, idx, src, axis=0):
    return tgt.clone().index_add_(axis, idx, src)
def _segment_sum(src, seg, n):
    out = torch.zeros((n,) + src.shape[1:], dtype=src.dtype)
    return out.index_add_(0, seg, src)
def _pad(x, pw):
    flat = tuple(v for pair in reversed(pw) for v in pair)
    return torch.nn.functional.pad(x, flat)

kernel_name = 'standalone__standard_2d_1d_3d_conv__vision'

def setup_inputs():

    _w = (lambda a: (lambda t: t.to(torch.bfloat16) if t.is_floating_point() else t)(torch.as_tensor(a)))
    H = W = 384
    C = 384
    K = 1
    return {
        "x": _w((lambda *s: torch.randn(*s, dtype=torch.bfloat16) * 0.05)(1, H, W, C)),
        "w": _w((lambda *s: torch.randn(*s, dtype=torch.bfloat16) * 0.05)(K, K, C, C)),
        "b": _w((lambda *s: torch.randn(*s, dtype=torch.bfloat16) * 0.05)(C)),
    }

def reference(x, w, b):
    B, H, W, Cin = x.shape
    K = w.shape[0]
    pl = (K - 1) // 2
    pr = K // 2
    xp = _pad(x, ((0, 0), (pl, pr), (pl, pr), (0, 0)))
    out = sum(
        torch.einsum('bhwc,cd->bhwd', xp[:, i:i+H, j:j+W, :], w[i, j])
        for i in range(K) for j in range(K)
    )
    return out + b[None, None, None, :]
```

```python
import argparse
import sys

NAME = "standalone__standard_2d_1d_3d_conv__vision"
ROWB = 768
TILE_PX = 16
TILEB = TILE_PX * ROWB
NWG = 256
NT = 36
XBYTES = 147456 * ROWB
STG_STRIDE = 784
STGB = TILE_PX * STG_STRIDE


class Asm:
    def __init__(self):
        self.lines = []
        self.vm = []
        self.lg = []
        self.vmlog = None

    def e(self, s):
        self.lines.append("    " + s)

    def label(self, s):
        self.lines.append(s + ":")

    def vmop(self, s, tag):
        if len(self.vm) >= 63:
            n = 62
            self.e(f"s_waitcnt vmcnt({n})")
            self.vm = self.vm[len(self.vm) - n:]
        self.e(s)
        self.vm.append(tag)
        if self.vmlog is not None:
            self.vmlog.append(tag)

    def lgop(self, s, tag):
        if len(self.lg) >= 15:
            self.e("s_waitcnt lgkmcnt(14)")
            self.lg = self.lg[len(self.lg) - 14:]
        self.e(s)
        self.lg.append(tag)

    @staticmethod
    def _need(q, tag):
        idx = [i for i, t in enumerate(q) if t == tag]
        if not idx:
            return None
        return len(q) - 1 - idx[-1]

    def wait(self, vm=None, lg=None):
        parts = []
        if vm is not None:
            n = 0 if vm == "all" else self._need(self.vm, vm)
            if n is not None:
                parts.append(f"vmcnt({n})")
                self.vm = self.vm[len(self.vm) - n:] if n else []
        if lg is not None:
            n = 0 if lg == "all" else self._need(self.lg, lg)
            if n is not None:
                parts.append(f"lgkmcnt({n})")
                self.lg = self.lg[len(self.lg) - n:] if n else []
        if parts:
            self.e("s_waitcnt " + " ".join(parts))


def vr(a, n=1):
    return f"v{a}" if n == 1 else f"v[{a}:{a + n - 1}]"


def ar(a, n=1):
    return f"a{a}" if n == 1 else f"a[{a}:{a + n - 1}]"


SRD_X, SRD_W, SRD_B, SRD_O = 12, 16, 20, 24
P_X, P_W, P_B, P_O = 4, 6, 8, 10
S_WAVE = 28
S_T = 29
S_DOFF = 30
S_OOFF = 31
S_M0 = 32
S_XD = 33
S_CUR = 34
S_KOFF = 35
S_SELLO, S_SELHI = 36, 37
S_NXT = 38
S_TMP = 39
S_SIZE = 40
S_W3 = 41
S_OSZ = 43
S_WB = 80
S_DCUR = 42
S_DBG = 44
S_ST = 46
SRD_D = 64

V_XA = 1
V_DMA = 5
V_SW = 8
V_SR = 9
V_ST = 12
V_WA, V_WB = 13, 14
V_BO = 15
V_OUT = 16
V_WV, V_LN, V_P, V_G = 28, 29, 30, 31
STG0 = 32


def region(i):
    return STG0 + 32 * i


A_W = 0
A_XF = 144
A_RB = 192
A_BI = 204


def w_final(s):
    if s < 6:
        return ("a", A_W + 24 * s)
    reg = {6: 5, 7: 6, 8: 0, 9: 1, 10: 2, 11: 3}[s]
    return ("v", region(reg))


def w_stage(s):
    return region(s if s < 7 else s - 7)


SPARE = [region(r) + 24 for r in (5, 6, 0, 1, 2, 3)]
QUADS = [b + o for b in SPARE for o in (0, 4)]
ACC = [QUADS[:6], QUADS[6:]]
BIAS = [region(4) + 4 * t for t in range(6)]


def wfrag(s, t):
    k, base = w_final(s)
    b = base + 4 * t
    return f"{k}[{b}:{b + 3}]"


OUTJ = [16, 20, 24, region(4) + 24]


class Gen:
    def __init__(self, o):
        global A_RB, A_BI
        if o.dchain:
            A_RB, A_BI = 240, 192
        self.nst = 4 if o.direct else 3
        self.o = o
        self.a = Asm()
        self.R = o.R
        self.STG = o.R * TILEB
        self.lds = self.STG + 2 * STGB
        assert self.lds <= 163840
        self.tstride = TILEB if o.contig else NWG * TILEB
        self.ldf = (" " + o.ld) if o.ld else ""
        self.stf = (" " + o.st) if o.st else ""
        self.wf = (" " + o.wf) if o.wf else ""
        self.nstamp = 0

    def stamp(self, i):
        if self.o.stamps:
            self.a.e(f"s_memrealtime s[{S_ST + 2 * i}:{S_ST + 2 * i + 1}]")
            self.nstamp = max(self.nstamp, i + 1)

    def dma(self, i, tag):
        self.a.vmop(f"buffer_load_dwordx4 v{V_DMA + i}, s[{SRD_X}:{SRD_X + 3}], s{S_DOFF} offen offset:{1024 * i}{self.ldf} lds", tag)

    def store(self, i, tag, soff):
        if self.o.direct:
            self.a.vmop(f"buffer_store_dwordx3 {vr(OUTJ[i], 3)}, v{V_ST}, s[{SRD_O}:{SRD_O + 3}], {soff} offen offset:{768 * i}{self.stf}", tag)
            return
        self.a.vmop(f"buffer_store_dwordx4 {ar(A_RB + 4 * i, 4)}, v{V_ST}, s[{SRD_O}:{SRD_O + 3}], {soff} offen offset:{1024 * i}{self.stf}", tag)

    def prologue_tile(self, with_dummy):
        a = self.a
        t = self.ntile
        self.ntile += 1
        a.e(f"s_add_u32 s{S_M0}, s{S_DCUR}, s{S_W3}")
        a.e(f"s_mov_b32 m0, s{S_M0}")
        a.e(f"s_add_u32 s{S_DCUR}, s{S_DCUR}, {TILEB}")
        if with_dummy:
            for tag in self.iter_ops:
                if tag[0] == "d":
                    self.dma(int(tag[1]), f"x{t}")
                else:
                    self.store(int(tag[1]), "dummy", "0")
        else:
            for i in range(3):
                self.dma(i, f"x{t}")
        a.e(f"s_add_u32 s{S_DOFF}, s{S_DOFF}, {self.tstride}")

    def w_loads(self, s):
        a = self.a
        base = w_stage(s)
        a.e(f"s_mov_b32 s{S_KOFF}, {s * 24576}")
        for e in range(8):
            off = V_WA if e < 4 else V_WB
            a.vmop(f"buffer_load_dwordx3 {vr(base + 4 * e, 3)}, v{off}, s[{SRD_W}:{SRD_W + 3}], s{S_KOFF} offen offset:{(e & 3) * 768}{self.wf}", f"w{s}")

    def w_perms(self, s):
        a = self.a
        base = w_stage(s)
        kind, fb = w_final(s)
        n = 0
        for t in range(6):
            qd, u = t >> 1, t & 1
            sel = S_SELHI if u else S_SELLO
            for i in range(4):
                lo = base + 4 * (2 * i) + qd
                hi = base + 4 * (2 * i + 1) + qd
                if kind == "v":
                    a.e(f"v_perm_b32 v{fb + 4 * t + i}, v{hi}, v{lo}, s{sel}")
                else:
                    a.e(f"v_perm_b32 v{V_OUT + (n % 8)}, v{hi}, v{lo}, s{sel}")
                    if n % 4 == 3:
                        for m in range(n - 3, n + 1):
                            a.e(f"v_accvgpr_write_b32 a{fb + m}, v{V_OUT + (m % 8)}")
                n += 1

    def late_setup(self):
        a = self.a
        R, STG = self.R, self.STG
        t0, t1 = V_OUT, V_OUT + 1
        if self.o.direct:
            a.e(f"v_mul_u32_u24 v{V_BO}, 12, v{V_P}")
        else:
            a.e(f"v_mul_u32_u24 v{V_BO}, 48, v{V_G}")
        a.e(f"v_mul_u32_u24 v{t0}, 192, v{V_WV}")
        a.e(f"v_add_u32 v{V_BO}, v{V_BO}, v{t0}")
        a.e(f"s_mov_b32 s{SRD_B}, s{P_B}")
        a.e(f"s_and_b32 s{SRD_B + 1}, s{P_B + 1}, 0xffff")
        a.e(f"s_mov_b32 s{SRD_B + 2}, 768")
        a.e(f"s_mov_b32 s{SRD_B + 3}, 0x20000")
        if self.o.direct:
            a.vmop(f"buffer_load_dwordx3 {ar(A_BI, 3)}, v{V_BO}, s[{SRD_B}:{SRD_B + 3}], 0 offen", "bias")
        else:
            for i in range(3):
                a.vmop(f"buffer_load_dwordx4 {ar(A_BI + 4 * i, 4)}, v{V_BO}, s[{SRD_B}:{SRD_B + 3}], 0 offen offset:{16 * i}", "bias")
        a.e(f"v_mul_u32_u24 v{V_SW}, {STG_STRIDE}, v{V_P}")
        a.e(f"v_add_u32 v{V_SW}, v{V_SW}, v{V_BO}")
        a.e(f"v_add_u32 v{V_SW}, {STG}, v{V_SW}")
        a.e(f"v_mul_u32_u24 v{t0}, {ROWB}, v{V_P}")
        for b in range(4):
            a.e(f"v_add_u32 v{V_XA + b}, {4 * b}, v{V_G}")
            a.e(f"v_xor_b32 v{V_XA + b}, v{V_XA + b}, v{V_P}")
            a.e(f"v_lshl_add_u32 v{V_XA + b}, v{V_XA + b}, 4, v{t0}")
        if self.o.direct:
            a.e(f"v_mul_u32_u24 v{V_ST}, 3072, v{V_G}")
            a.e(f"v_add_u32 v{V_ST}, v{V_ST}, v{V_BO}")
        else:
            a.e(f"v_mul_u32_u24 v{V_ST}, 3072, v{V_WV}")
            a.e(f"v_lshl_add_u32 v{V_ST}, v{V_LN}, 4, v{V_ST}")
        a.e(f"v_mul_u32_u24 v{t0}, {4 * STG_STRIDE}, v{V_WV}")
        a.e(f"v_add_u32 v{t0}, {STG}, v{t0}")
        for i in range(3):
            self.rr(i, t1)
            a.e(f"v_add_u32 v{t1}, v{t1}, v{V_LN}")
            a.e(f"v_lshl_add_u32 v{t1}, v{t1}, 4, v{t0}")
            a.e(f"v_add_u32 v{V_SR + i}, {1024 * i}, v{t1}")
        a.e(f"s_sub_u32 s{S_OOFF}, s{S_OOFF}, {(2 if self.o.direct else 3) * self.tstride}")
        a.e(f"s_mov_b32 s{S_OSZ}, 0")
        if self.o.wbl2 is not None:
            a.e(f"s_cmp_lt_u32 s2, {self.o.nwb}")
            a.e(f"s_cselect_b32 s{S_WB}, {self.o.wbl2}, -1")
            a.e(f"s_cmp_eq_u32 s{S_WAVE}, 0")
            a.e(f"s_cselect_b32 s{S_WB}, s{S_WB}, -1")
        a.e(f"s_mov_b32 s{S_SIZE}, {0 if self.o.nold else XBYTES}")
        a.e(f"s_mov_b32 s{S_T}, 0")
        a.e(f"s_mov_b32 s{S_CUR}, 0")

    def rr(self, i, dst):
        a = self.a
        if i == 0:
            a.e(f"v_add_u32 v{dst}, 16, v{V_LN}")
            a.e(f"v_lshrrev_b32 v{dst}, 6, v{dst}")
        elif i == 1:
            a.e(f"v_lshrrev_b32 v{dst}, 5, v{V_LN}")
            a.e(f"v_add_u32 v{dst}, 1, v{dst}")
        else:
            a.e(f"v_add_u32 v{dst}, 48, v{V_LN}")
            a.e(f"v_lshrrev_b32 v{dst}, 6, v{dst}")
            a.e(f"v_add_u32 v{dst}, 2, v{dst}")

    def bias_convert(self):
        a = self.a
        if self.o.direct:
            for d in range(3):
                a.e(f"v_accvgpr_read_b32 v{V_OUT + d}, a{A_BI + d}")
            for qd in range(3):
                for j in range(4):
                    a.e(f"v_lshlrev_b32 v{BIAS[2 * qd] + j}, 16, v{V_OUT + qd}")
                    a.e(f"v_and_b32 v{BIAS[2 * qd + 1] + j}, 0xffff0000, v{V_OUT + qd}")
            return
        for d in range(12):
            a.e(f"v_accvgpr_read_b32 v{V_OUT + d}, a{A_BI + d}")
        for j in range(4):
            for qd in range(3):
                d = 3 * j + qd
                a.e(f"v_lshlrev_b32 v{BIAS[2 * qd] + j}, 16, v{V_OUT + d}")
                a.e(f"v_and_b32 v{BIAS[2 * qd + 1] + j}, 0xffff0000, v{V_OUT + d}")

    def xf(self, s, buf=0):
        return A_XF + 48 * buf + 4 * s

    def xread(self, s, tag, buf=0):
        self.a.lgop(f"ds_read_b128 {ar(self.xf(s, buf), 4)}, v{V_XA + (s & 3)} offset:{(s >> 2) * 256}", tag)

    def cvt(self, P, d):
        j, qd = d // 3, d % 3
        if self.o.direct:
            self.a.e(f"v_cvt_pk_bf16_f32 v{OUTJ[j] + qd}, v{ACC[P][2 * qd] + j}, v{ACC[P][2 * qd + 1] + j}")
            return
        self.a.e(f"v_cvt_pk_bf16_f32 v{V_OUT + d}, v{ACC[P][2 * qd] + j}, v{ACC[P][2 * qd + 1] + j}")

    def swrite(self, P, i):
        self.a.lgop(f"ds_write_b128 v{V_SW}, {vr(V_OUT + 4 * i, 4)} offset:{16 * i + P * STGB}", "sw")

    def readback(self, P, i):
        self.a.lgop(f"ds_read_b128 {ar(A_RB + 4 * i, 4)}, v{V_SR + i} offset:{P * STGB}", f"rb{i}")

    def long_positions(self, w):
        o = self.o
        if not o.stag:
            pos = {f"d{i}": o.dpos[i] for i in range(3)}
            pos.update({f"s{i}": o.spos[i] for i in range(self.nst)})
            if not o.direct:
                pos.update({f"w{i}": o.cpos + 4 * i + 4 for i in range(3)})
            return pos
        return {name: o.lbase + o.lstep * k + o.lstag * w for k, name in enumerate(o.lorder)}

    def iteration(self, P, D, w=0):
        o, a, R = self.o, self.a, self.R
        look = o.look
        side = {m: [] for m in range(72)}
        load = {m: 0 for m in range(72)}
        pos = self.long_positions(w)
        for name, m in pos.items():
            assert 0 <= m < 72, (name, m)
            load[m] += 8
        wstep = o.wstep
        if not o.dchain:
            for s in range(wstep, 12, wstep):
                load[6 * s - 1] += 4
        load[71] += 4

        def at(m, f, kind=None):
            if kind is None or kind not in o.skip:
                side[m].append(f)

        def put(lo, hi, f, kind=None, cost=4):
            hi = min(hi, 71)
            assert lo <= hi, (lo, hi)
            best = min(range(lo, hi + 1), key=lambda m: (load[m] + cost > o.gapcap, load[m] if load[m] + cost > o.gapcap else 0, m))
            load[best] += cost
            at(best, f, kind)
            return best

        for i in range(3):
            at(pos[f"d{i}"], lambda i=i: self.dma(i, "d"), "dma")
        for i in range(self.nst):
            def st(i=i):
                if not o.direct:
                    a.wait(lg=f"rb{i}")
                self.store(i, "s", f"s{S_OOFF}")
            at(pos[f"s{i}"], st, "st")
        if not o.direct:
            for i in range(3):
                at(pos[f"w{i}"], lambda i=i: self.swrite(1 - P, i), "sw")
        xpos = {}
        if o.dchain:
            for s in range(12):
                lo = o.xstep * s
                xpos[s] = put(lo, lo + 4, lambda s=s: self.xread(s, f"xf{s}", 1 - P), "xr")
        else:
            for s in range(12):
                n = s + look
                xpos[n] = put(6 * s, 6 * s + 4, lambda n=n: self.xread(n % 12, f"xf{n % 12}"), "xr")
        dlast = max(pos[f"d{i}"] for i in range(3))
        m = put(dlast + 1, 71, lambda: a.e(f"s_add_u32 s{S_DOFF}, s{S_DOFF}, {self.tstride}"))
        m = put(dlast + 1, 71, lambda: a.e(f"s_add_u32 s{S_DCUR}, s{S_DCUR}, {TILEB}"))
        m = put(m + 1, 71, lambda: (a.e(f"s_cmp_eq_u32 s{S_DCUR}, {R * TILEB}"), a.e(f"s_cselect_b32 s{S_DCUR}, 0, s{S_DCUR}")), cost=8)
        m = put(m + 1, 71, lambda: a.e(f"s_add_u32 m0, s{S_DCUR}, s{S_W3}"))
        if o.wbl2 is not None and P == (o.wbl2 & 1):
            def wb():
                self.nlabel = getattr(self, "nlabel", 0) + 1
                a.e(f"s_cmp_lg_u32 s{S_T}, s{S_WB}")
                a.e(f"s_cbranch_scc1 L_wb{self.nlabel}")
                a.e("buffer_wbl2 sc1")
                a.label(f"L_wb{self.nlabel}")
            put(30, 38, wb, cost=8)
        mt = put(40, 60, lambda: a.e(f"s_add_u32 s{S_T}, s{S_T}, 1"))
        put(max(dlast, mt) + 1, 71, lambda: (a.e(f"s_cmp_lt_u32 s{S_T}, {NT - D}"), a.e(f"s_cselect_b32 s{SRD_X + 2}, s{S_SIZE}, 0")), cost=8)
        sfirst = min(pos[f"s{i}"] for i in range(self.nst))
        put(0, sfirst - 1, lambda: a.e(f"s_add_u32 s{S_OOFF}, s{S_OOFF}, {self.tstride}"))
        if o.direct:
            if P == 1 and not o.nost:
                put(0, sfirst - 1, lambda: a.e(f"s_mov_b32 s{SRD_O + 2}, {XBYTES}"))
            prev = o.cpos - 1
            for j in range(4):
                hi = pos[f"s{j}"] - 1
                for q in range(3):
                    lo = max(prev + 1, hi - o.cwin) if q == 0 else prev + 1
                    lo = min(lo, hi - (2 - q))
                    prev = put(lo, hi - (2 - q), lambda j=j, q=q: self.cvt(1 - P, 3 * j + q), "cvt")
        else:
            prev = -1
            for i in range(3):
                hi = pos[f"s{i}"] - o.rbdist
                prev = put(max(prev + 1, hi - 8, 0), max(hi, prev + 1), lambda i=i: self.readback(P, i), "rb")
            if P == 0 and not o.nost:
                m = put(0, sfirst - 2, lambda: a.e(f"s_mov_b32 s{SRD_O + 2}, s{S_OSZ}"))
                put(m + 1, sfirst - 1, lambda: a.e(f"s_mov_b32 s{S_OSZ}, {XBYTES}"))
            prev = o.cpos - 1
            for d in range(12):
                hi = pos[f"w{d // 4}"] - 1
                lo = max(prev + 1, hi - o.cwin, o.cpos) if d % 4 == 0 else prev + 1
                lo = min(lo, hi - (3 - d % 4))
                prev = put(lo, hi - (3 - d % 4), lambda d=d: self.cvt(1 - P, d), "cvt")
        if o.dchain:
            last_use = {b: xpos[8 + b] for b in range(4)}
            next_use = {b: 72 for b in range(4)}
        else:
            last_use = {b: xpos[8 + b] for b in range(4)}
            next_use = {b: xpos.get(12 + b, 72) for b in range(4)}
        first_upd = last_use[0] + 1
        m = put(8, first_upd - 6, lambda: a.e(f"s_add_u32 s{S_NXT}, s{S_CUR}, {TILEB}"))
        m = put(m + 1, first_upd - 4, lambda: (a.e(f"s_cmp_eq_u32 s{S_NXT}, {R * TILEB}"), a.e(f"s_cselect_b32 s{S_NXT}, 0, s{S_NXT}")), cost=8)
        m = put(m + 1, first_upd - 2, lambda: a.e(f"s_sub_u32 s{S_XD}, s{S_NXT}, s{S_CUR}"))
        m = put(m + 1, first_upd - 1, lambda: a.e(f"s_mov_b32 s{S_CUR}, s{S_NXT}"))
        for b in range(4):
            lo = max(last_use[b] + 1, m + 1)
            put(lo, next_use[b] - 1, lambda b=b: a.e(f"v_add_u32 v{V_XA + b}, s{S_XD}, v{V_XA + b}"))

        for m in range(72):
            s, t = m // 6, m % 6
            if not o.dchain and t == 0 and s % wstep == 0:
                a.wait(lg=f"xf{s + wstep - 1}")
            buf = 0
            if o.dchain:
                g, r = m // (12 * o.dchain), m % (12 * o.dchain)
                s, t = r // o.dchain, g * o.dchain + r % o.dchain
                buf = P
            elif o.chain:
                g, r = m // (12 * o.chain), m % (12 * o.chain)
                s, t = r // o.chain, g * o.chain + r % o.chain
            c = BIAS[t] if s == 0 else ACC[P][t]
            xfr = ar(self.xf(s, buf), 4)
            if o.zmfma:
                xfr = "a[252:255]"
            if o.m32:
                if t % 2 == 0:
                    d = 208 + 16 * (t // 2)
                    a.e(f"v_mfma_f32_32x32x16_bf16 {ar(d, 16)}, {wfrag(s, t)}, {xfr}, {ar(d, 16)}")
            elif o.nomfma:
                pass
            elif o.swapab or o.direct:
                a.e(f"v_mfma_f32_16x16x32_bf16 {vr(ACC[P][t], 4)}, {xfr}, {wfrag(s, t)}, {vr(c, 4)}")
            else:
                a.e(f"v_mfma_f32_16x16x32_bf16 {vr(ACC[P][t], 4)}, {wfrag(s, t)}, {xfr}, {vr(c, 4)}")
            for f in side[m]:
                f()

    def iter_order(self):
        orders = []
        for w in range(4):
            pos = self.long_positions(w)
            ev = [(pos[f"d{i}"], 0, f"d{i}") for i in range(3)] + [(pos[f"s{i}"], 1, f"s{i}") for i in range(self.nst)]
            orders.append([t for _, _, t in sorted(ev)])
        assert all(x == orders[0] for x in orders)
        return orders[0]

    def program(self, gname, pre, mid, D):
        o, a, R = self.o, self.a, self.R
        assert D <= R - 1 and pre + sum(mid) <= D
        self.iter_ops = self.iter_order()
        a.vm, a.lg = [], []
        self.ntile = 0
        wd = o.wdepth
        a.label(f"L_{gname}")
        for _ in range(pre):
            self.prologue_tile(False)
        if not o.now:
            for s in range(wd):
                self.w_loads(s)
                if s == 0:
                    self.late_setup()
                if s < 11:
                    for _ in range(mid[s]):
                        self.prologue_tile(False)
            self.stamp(1)
            for s in range(12):
                a.wait(vm=f"w{s}")
                if s == 0:
                    self.stamp(2)
                self.w_perms(s)
                if s + wd < 12:
                    self.w_loads(s + wd)
                    if s + wd < 11:
                        for _ in range(mid[s + wd]):
                            self.prologue_tile(False)
                if s + wd >= 11 and s >= o.xlate and self.ntile < D:
                    self.prologue_tile(True)
        else:
            self.late_setup()
        a.wait(vm="bias")
        while self.ntile < D:
            self.prologue_tile(True)
        self.bias_convert()
        if o.zmfma:
            for i in range(4):
                a.e(f"v_accvgpr_write_b32 a{252 + i}, 0")
        self.stamp(3)
        if o.stamps:
            a.e("s_waitcnt lgkmcnt(0)")
        a.wait(vm="x0")
        a.e("s_barrier")
        for s in range(12 if o.dchain else o.look):
            self.xread(s, f"xf{s}")
        if o.dchain:
            for b in range(4):
                a.e(f"v_add_u32 v{V_XA + b}, {TILEB}, v{V_XA + b}")
            a.e(f"s_mov_b32 s{S_CUR}, {TILEB}")
            a.wait(lg="all")
        pro_queue = list(a.vm)
        entry_lg = list(a.lg)
        ops = self.iter_ops
        last_d = max(i for i, t in enumerate(ops) if t[0] == "d")
        NW = (len(ops) - 1 - last_d) + len(ops) * (D - 2) - (1 if o.wbl2 is not None else 0)
        assert NW + len(ops) <= 63
        self.check_waits(pro_queue, D, NW, ops)
        a.e(f"s_add_u32 m0, s{S_DCUR}, s{S_W3}")
        nvar = 4 if o.stag else 1
        if nvar > 1:
            for w in range(1, 4):
                a.e(f"s_cmp_eq_u32 s{S_WAVE}, {w}")
                a.e(f"s_cbranch_scc1 L_{gname}_loop{w}")
        phases = [(o.st, NT)] if o.ksw is None else [(o.st, o.ksw), (o.st2, NT)]
        for w in range(nvar):
            keep = list(a.lines)
            a.lg = list(entry_lg)
            self.loop_body(D, NW, w)
            steady = list(a.lg)
            a.lines = keep
            for ph, (flags, tend) in enumerate(phases):
                self.stf = (" " + flags) if flags else ""
                a.lg = list(steady)
                a.lines.append(".p2align 6")
                a.label(f"L_{gname}_loop{w}" + ("b" * ph))
                nl0 = self.loop_body(D, NW, w)
                assert o.skip or o.itst or o.dchain or (a.lg == steady and steady[len(steady) - nl0:] == entry_lg[len(entry_lg) - nl0:]), (a.lg, steady, entry_lg)
                a.e(f"s_cmp_lt_u32 s{S_T}, {tend}")
                a.e(f"s_cbranch_scc1 L_{gname}_loop{w}" + ("b" * ph))
            a.e("s_branch L_drain")

    def loop_body(self, D, NW, w):
        o, a = self.o, self.a
        nl0 = None
        for P in range(2):
            a.vm = []
            nl = self.a._need(a.lg, "sw")
            nl = len(a.lg) if nl is None else nl
            if o.dchain:
                nl = 0
            if o.itst:
                a.e("s_memrealtime s[74:75]")
                a.e("s_memtime s[78:79]")
                nl = 0
            if nl0 is None:
                nl0 = nl
            a.e(f"s_waitcnt vmcnt({NW}) lgkmcnt({nl})")
            if o.itst:
                a.e(f"s_mov_b32 s76, m0")
                a.e(f"s_mov_b32 m0, s{S_T}")
                a.e("s_nop 0")
                a.e(f"v_writelane_b32 v{V_G}, s74, m0")
                a.e(f"v_writelane_b32 v{V_P}, s78, m0")
                a.e(f"s_mov_b32 m0, s76")
            a.lg = a.lg[len(a.lg) - nl:] if nl else []
            if "bar" not in o.skip:
                a.e("s_barrier")
            self.iteration(P, D, w)
        return nl0

    @staticmethod
    def check_waits(pro_queue, D, NW, ops):
        q = list(pro_queue)
        for t in range(NT):
            q = q[len(q) - NW:] if len(q) > NW else q
            assert f"x{t + 1}" not in q and f"x{t}" not in q, f"iteration {t}: tile not covered"
            q += [f"x{t + D}" if x[0] == "d" else "st" for x in ops]
            assert len(q) <= 63

    def drain(self):
        o, a = self.o, self.a
        a.label("L_drain")
        a.vm, a.lg = [], []
        if o.direct:
            a.e(f"s_add_u32 s{S_OOFF}, s{S_OOFF}, {self.tstride}")
            a.e("s_nop 6")
            self.stamp(4)
            for j in range(4):
                for q in range(3):
                    self.cvt(1, 3 * j + q)
                self.store(j, "s", f"s{S_OOFF}")
            return
        a.e("s_waitcnt lgkmcnt(0)")
        a.e("s_barrier")
        a.e(f"s_add_u32 s{S_OOFF}, s{S_OOFF}, {self.tstride}")
        a.e("s_nop 4")
        for i in range(3):
            self.readback(0, i)
        for d in range(12):
            self.cvt(1, d)
            if d % 4 == 3:
                self.swrite(1, d // 4)
        for i in range(3):
            a.wait(lg=f"rb{i}")
            self.store(i, "s", f"s{S_OOFF}")
        a.e(f"s_add_u32 s{S_OOFF}, s{S_OOFF}, {self.tstride}")
        a.e("s_waitcnt lgkmcnt(0)")
        a.lg = []
        a.e("s_barrier")
        self.stamp(4)
        for i in range(3):
            a.e(f"ds_read_b128 {ar(A_XF + 4 * i, 4)}, v{V_SR + i} offset:{STGB}")
        for i in range(3):
            a.e(f"s_waitcnt lgkmcnt({0 if o.stamps else 2 - i})")
            a.e(f"buffer_store_dwordx4 {ar(A_XF + 4 * i, 4)}, v{V_ST}, s[{SRD_O}:{SRD_O + 3}], s{S_OOFF} offen offset:{1024 * i}{self.stf}")

    def build(self):
        o, a = self.o, self.a
        a.lines.append(f"""; 1x1 convolution as a GEMM: out[147456,384] = x[147456,384] @ w[384,384] + b, bf16.
; @launch grid=({NWG},1,1) block=(256,1,1) lds={self.lds}
.amdgcn_target "amdgcn-amd-amdhsa--gfx950"
.text
.globl {NAME}_kernel
.p2align 8
.type {NAME}_kernel,@function
{NAME}_kernel:""")
        a.e("s_load_dwordx8 s[4:11], s[0:1], 0")
        if o.stamps:
            a.e(f"s_load_dwordx2 s[{S_DBG}:{S_DBG + 1}], s[0:1], 40")
        self.stamp(0)
        if o.clk:
            a.e("s_memtime s[70:71]")
        a.e(f"s_cmp_ge_u32 s2, {NWG}")
        a.e("s_cbranch_scc1 L_done")
        a.e(f"v_lshrrev_b32 v{V_WV}, 6, v0")
        a.e(f"v_and_b32 v{V_LN}, 63, v0")
        a.e(f"v_readfirstlane_b32 s{S_WAVE}, v{V_WV}")
        a.e(f"v_and_b32 v{V_P}, 15, v0")
        a.e(f"v_bfe_u32 v{V_G}, v0, 4, 2")
        a.e(f"v_mul_u32_u24 v{V_WA}, 6144, v{V_G}")
        a.e(f"v_mul_u32_u24 v{V_WB}, 12, v{V_P}")
        a.e(f"v_add_u32 v{V_WA}, v{V_WA}, v{V_WB}")
        a.e(f"v_mul_u32_u24 v{V_WB}, 192, v{V_WV}")
        a.e(f"v_add_u32 v{V_WA}, v{V_WA}, v{V_WB}")
        a.e(f"v_add_u32 v{V_WB}, 3072, v{V_WA}")
        t0, t1 = V_OUT, V_OUT + 1
        a.e(f"v_mul_u32_u24 v{t0}, 3072, v{V_WV}")
        for i in range(3):
            self.rr(i, t1)
            a.e(f"v_lshl_add_u32 v{t1}, v{V_WV}, 2, v{t1}")
            a.e(f"v_xor_b32 v{t1}, v{t1}, v{V_LN}")
            a.e(f"v_lshl_add_u32 v{V_DMA + i}, v{t1}, 4, v{t0}")
        if o.contig:
            a.e(f"s_mul_i32 s{S_DOFF}, s2, {NT * TILEB}")
        else:
            a.e(f"s_mul_i32 s{S_DOFF}, s2, {TILEB}")
        a.e(f"s_mov_b32 s{S_OOFF}, s{S_DOFF}")
        a.e(f"s_mul_i32 s{S_W3}, s{S_WAVE}, 3072")
        a.e(f"s_mov_b32 s{S_DCUR}, 0")
        a.e(f"s_mov_b32 s{S_SELLO}, 0x05040100")
        a.e(f"s_mov_b32 s{S_SELHI}, 0x07060302")
        for srd, size in ((SRD_X, 0 if o.nold else XBYTES), (SRD_W, 384 * 768), (SRD_O, 0)):
            a.e(f"s_mov_b32 s{srd + 2}, {size}")
            a.e(f"s_mov_b32 s{srd + 3}, 0x20000")
        a.e("s_waitcnt lgkmcnt(0)")
        for srd, ptr in ((SRD_X, P_X), (SRD_W, P_W), (SRD_O, P_O)):
            a.e(f"s_mov_b32 s{srd}, s{ptr}")
            a.e(f"s_and_b32 s{srd + 1}, s{ptr + 1}, 0xffff")
        groups = o.groups
        if len(groups) == 2:
            a.e(f"s_bitcmp1_b32 s2, {o.gbit}")
            a.e("s_cbranch_scc1 L_g1")
        for gi, (pre, mid, D) in enumerate(groups):
            self.program(f"g{gi}", pre, mid, D)
        self.drain()
        if o.stamps:
            self.stamp_out()
        a.label("L_done")
        a.e("s_endpgm")
        a.lines.append(f""".section .rodata,"a"
.p2align 6
.amdhsa_kernel {NAME}_kernel
  .amdhsa_next_free_vgpr 512
  .amdhsa_next_free_sgpr 96
  .amdhsa_accum_offset 256
  .amdhsa_group_segment_fixed_size 0
  .amdhsa_kernarg_size 48
  .amdhsa_user_sgpr_count 2
  .amdhsa_user_sgpr_kernarg_segment_ptr 1
  .amdhsa_system_sgpr_workgroup_id_x 1
.end_amdhsa_kernel""")
        return "\n".join(a.lines) + "\n"

    def stamp_out(self):
        o, a = self.o, self.a
        a.e("s_waitcnt vmcnt(0)")
        self.stamp(5)
        if o.clk:
            a.e("s_memtime s[72:73]")
        a.e("s_waitcnt lgkmcnt(0)")
        n = self.nstamp
        if o.clk:
            a.e("s_sub_u32 s72, s72, s70")
            a.e(f"s_mov_b32 s{S_ST + 2 * n}, s72")
            n += 1
        a.e(f"s_cmp_lg_u32 s{S_WAVE}, 0")
        a.e("s_cbranch_scc1 L_done")
        a.e(f"s_mov_b32 s{SRD_D}, s{S_DBG}")
        a.e(f"s_and_b32 s{SRD_D + 1}, s{S_DBG + 1}, 0xffff")
        a.e(f"s_mov_b32 s{SRD_D + 2}, {NWG * 64}")
        a.e(f"s_mov_b32 s{SRD_D + 3}, 0x20000")
        a.e(f"v_mov_b32 v{V_WV}, 0")
        a.e(f"s_lshl_b32 s{S_TMP}, s2, 6")
        for i in range(n):
            a.e(f"v_mov_b32 v{V_LN}, s{S_ST + 2 * i}")
            a.e(f"buffer_store_dword v{V_LN}, v{V_WV}, s[{SRD_D}:{SRD_D + 3}], s{S_TMP} offen offset:{4 * i}")
        if o.itst:
            a.e(f"s_mov_b32 s{SRD_D + 2}, {NWG * 64 + NWG * 512}")
            a.e(f"s_lshl_b32 s{S_NXT}, s2, 9")
            a.e(f"s_add_u32 s{S_NXT}, s{S_NXT}, {NWG * 64}")
            a.e(f"v_mbcnt_lo_u32_b32 v{V_OUT}, -1, 0")
            a.e(f"v_mbcnt_hi_u32_b32 v{V_OUT}, -1, v{V_OUT}")
            a.e(f"v_lshlrev_b32 v{V_OUT}, 2, v{V_OUT}")
            a.e(f"buffer_store_dword v{V_G}, v{V_OUT}, s[{SRD_D}:{SRD_D + 3}], s{S_NXT} offen")
            a.e(f"buffer_store_dword v{V_P}, v{V_OUT}, s[{SRD_D}:{SRD_D + 3}], s{S_NXT} offen offset:256")
        a.e(f"s_getreg_b32 s{S_T}, hwreg(HW_REG_XCC_ID)")
        a.e(f"v_mov_b32 v{V_LN}, s{S_T}")
        a.e(f"buffer_store_dword v{V_LN}, v{V_WV}, s[{SRD_D}:{SRD_D + 3}], s{S_TMP} offen offset:60")


FLAGS = ("zmfma", "direct", "swapab", "stag", "m32", "itst", "nomfma", "contig", "stamps", "now", "nost", "nold", "clk")


def ints(s):
    return [int(x) for x in s.split(",")]


def parse(argv):
    p = argparse.ArgumentParser()
    p.add_argument("-o", default="-")
    p.add_argument("--R", type=int, default=11)
    p.add_argument("--ld", default="nt")
    p.add_argument("--st", default="sc0 sc1")
    p.add_argument("--wf", default="")
    p.add_argument("--wdepth", type=int, default=4)
    p.add_argument("--look", type=int, default=3)
    p.add_argument("--dpos", type=ints, default=[4, 16, 28])
    p.add_argument("--spos", type=ints, default=[22, 34, 46])
    p.add_argument("--cpos", type=int, default=6)
    p.add_argument("--xlate", type=int, default=9)
    p.add_argument("--gbit", type=int, default=3)
    p.add_argument("--chain", type=int, default=0)
    p.add_argument("--dchain", type=int, default=0)
    p.add_argument("--ksw", type=int, default=None)
    p.add_argument("--st2", default="sc0 sc1")
    p.add_argument("--wbl2", type=int, default=None)
    p.add_argument("--nwb", type=int, default=8)
    p.add_argument("--xstep", type=int, default=5)
    p.add_argument("--lorder", default="d0,d1,w0,d2,s0,w1,s1,w2,s2")
    p.add_argument("--lbase", type=int, default=0)
    p.add_argument("--lstep", type=int, default=8)
    p.add_argument("--lstag", type=int, default=2)
    p.add_argument("--wstep", type=int, default=1)
    p.add_argument("--gapcap", type=int, default=4)
    p.add_argument("--rbdist", type=int, default=10)
    p.add_argument("--cwin", type=int, default=12)
    p.add_argument("--skip", default="")
    p.add_argument("--groups", default="10:10/0:6")
    for f in FLAGS:
        p.add_argument("--" + f, action="store_true")
    o = p.parse_args(argv)
    gs = []
    for g in o.groups.split("/"):
        f = g.split(":")
        mid = ints(f[2]) if len(f) > 2 else [0] * 12
        gs.append((int(f[0]), mid, int(f[1])))
    o.groups = gs
    if o.direct and o.lorder == "d0,d1,w0,d2,s0,w1,s1,w2,s2":
        o.lorder = "d0,d1,s0,d2,s1,s2,s3"
        if o.lstep == 8:
            o.lstep = 10
    if o.direct and len(o.spos) == 3:
        o.spos = o.spos + [o.spos[-1] + 12]
    o.lorder = o.lorder.split(",")
    o.skip = set(o.skip.split(",")) if o.skip else set()
    return o


if __name__ == "__main__":
    o = parse(sys.argv[1:])
    text = Gen(o).build()
    if o.o == "-":
        sys.stdout.write(text)
    else:
        open(o.o, "w").write(text)
```

```python
import argparse
import sys

from gen2 import Asm, ar, vr

NAME = "standalone__standard_2d_1d_3d_conv__vision"
ROWB = 768
TILEB = 16 * ROWB
NWG = 256
NT = 36
XBYTES = 147456 * ROWB
STG_STRIDE = 784
STGB = 16 * STG_STRIDE
WBUF = 32 * ROWB

P_X, P_W, P_B, P_O = 4, 6, 8, 10
SRD_X, SRD_W, SRD_B, SRD_O = 12, 16, 20, 24
S_WAVE = 28
S_T = 29
S_DOFF = 30
S_OOFF = 31
S_WM0 = 32
S_XD = 33
S_CUR = 34
S_KOFF = 35
S_NXT = 38
S_ROT = 36
S_TMP = 39
S_SIZE = 40
S_W3 = 41
S_DCUR = 42
S_DBG = 44
S_ST = 46
SRD_D = 64

V_XA = 0
V_DMA = 4
V_WD = 7
V_TRE, V_TRO = 10, 11
V_SW = 12
V_SR = 13
V_ST = 16
V_BO = 17
V_WV, V_LN, V_P, V_G = 18, 19, 20, 21
V_T0, V_T1 = 22, 23
BIAS = [24 + 4 * t for t in range(6)]
ACC = [[48 + 4 * t for t in range(6)], [72 + 4 * t for t in range(6)]]
V_W = 96
V_TMP = 240
V_TRE2, V_TRO2 = 252, 253

A_W = 0
A_XF = 144
A_RB = 240


def wreg(s, t):
    return ("a", A_W + 24 * s + 4 * t) if s < 6 else ("v", V_W + 24 * (s - 6) + 4 * t)


def wfrag(s, t):
    k, b = wreg(s, t)
    return f"{k}[{b}:{b + 3}]"


def xf(s, buf):
    return A_XF + 48 * buf + 4 * s


class Gen:
    def __init__(self, o):
        self.o = o
        self.a = Asm()
        self.R = o.R
        self.WB = o.R * TILEB
        self.STG = self.WB
        self.lds = self.WB + 3 * WBUF
        assert self.lds <= 163840
        self.tstride = TILEB if o.contig else NWG * TILEB
        self.ldf = (" " + o.ld) if o.ld else ""
        self.stf = (" " + o.st) if o.st else ""
        self.wf = (" " + o.wf) if o.wf else ""
        self.nstamp = 0
        self.NB = o.nb
        self.LB = (o.R - 2) * TILEB
        self.wbase = [self.WB, self.WB + WBUF, self.WB + 2 * WBUF, self.LB]

    def wbuf(self, s):
        return self.wbase[s % self.NB]

    def stamp(self, i):
        if self.o.stamps:
            self.a.e(f"s_memrealtime s[{S_ST + 2 * i}:{S_ST + 2 * i + 1}]")
            self.nstamp = max(self.nstamp, i + 1)

    def dma(self, i, tag):
        self.a.vmop(f"buffer_load_dwordx4 v{V_DMA + i}, s[{SRD_X}:{SRD_X + 3}], s{S_DOFF} offen offset:{1024 * i}{self.ldf} lds", tag)

    def store(self, i, tag, soff, src=None):
        src = A_RB + 4 * i if src is None else src
        self.a.vmop(f"buffer_store_dwordx4 {ar(src, 4)}, v{V_ST}, s[{SRD_O}:{SRD_O + 3}], {soff} offen offset:{1024 * i}{self.stf}", tag)

    def prologue_tile(self, with_dummy):
        a = self.a
        t = self.ntile
        self.ntile += 1
        a.e(f"s_add_u32 m0, s{S_DCUR}, s{S_W3}")
        a.e(f"s_add_u32 s{S_DCUR}, s{S_DCUR}, {TILEB}")
        if with_dummy:
            for tag in self.iter_ops:
                if tag[0] == "d":
                    self.dma(int(tag[1]), f"x{t}")
                else:
                    self.store(int(tag[1]), "dummy", "0")
        else:
            for i in range(3):
                self.dma(i, f"x{t}")
        a.e(f"s_add_u32 s{S_DOFF}, s{S_DOFF}, {self.tstride}")

    def koff(self, s, h):
        a = self.a
        if not self.o.wrot:
            a.e(f"s_mov_b32 s{S_KOFF}, {s * WBUF + h * 16 * ROWB}")
            return
        a.e(f"s_add_u32 s{S_KOFF}, s{S_ROT}, {s * WBUF}")
        a.e(f"s_cmp_ge_u32 s{S_KOFF}, {12 * WBUF}")
        a.e(f"s_cselect_b32 s{S_TMP}, {12 * WBUF}, 0")
        a.e(f"s_sub_u32 s{S_KOFF}, s{S_KOFF}, s{S_TMP}")
        if h:
            a.e(f"s_add_u32 s{S_KOFF}, s{S_KOFF}, {16 * ROWB}")

    def w_dma(self, s):
        a = self.a
        for h in range(2):
            a.e(f"s_add_u32 m0, s{S_WM0}, {self.wbuf(s) + h * 3072}")
            self.koff(s, h)
            for i in range(3):
                a.vmop(f"buffer_load_dwordx4 v{V_WD + i}, s[{SRD_W}:{SRD_W + 3}], s{S_KOFF} offen offset:{1024 * i}{self.wf} lds", f"w{s}")

    def w_dma_ops(self, s):
        a = self.a
        ops = []
        for h in range(2):
            for i in range(3):
                def f(h=h, i=i):
                    if i == 0:
                        a.e(f"s_add_u32 m0, s{S_WM0}, {self.wbuf(s) + h * 3072}")
                        self.koff(s, h)
                    a.vmop(f"buffer_load_dwordx4 v{V_WD + i}, s[{SRD_W}:{SRD_W + 3}], s{S_KOFF} offen offset:{1024 * i}{self.wf} lds", f"w{s}")
                ops.append(f)
        return ops

    def w_tr(self, s, t, h2):
        k, b = wreg(s, t)
        rel = self.wbuf(s) - self.LB
        hi = rel >= 2 * WBUF
        base = (V_TRO2 if t & 1 else V_TRE2) if hi else (V_TRO if t & 1 else V_TRE)
        off = rel - (2 * WBUF if hi else 0) + 768 * h2 + 32 * t
        assert off < 65536
        self.a.lgop(f"ds_read_b64_tr_b16 {k}[{b + 2 * h2}:{b + 2 * h2 + 1}], v{base} offset:{off}", f"tr{s}")

    def xread(self, s, buf, tag):
        self.a.lgop(f"ds_read_b128 {ar(xf(s, buf), 4)}, v{V_XA + (s & 3)} offset:{(s >> 2) * 256}", tag)

    def xread_slot(self, s, buf, slot, tag):
        self.a.lgop(f"ds_read_b128 {ar(xf(s, buf), 4)}, v{V_XA + (s & 3)} offset:{slot * TILEB + (s >> 2) * 256}", tag)

    def cvt(self, P, t, h):
        r = ACC[P][t]
        self.a.e(f"v_cvt_pk_bf16_f32 v{r + h}, v{r + 2 * h}, v{r + 2 * h + 1}")

    def swrite(self, P, t, par):
        self.a.lgop(f"ds_write_b64 v{V_SW}, {vr(ACC[P][t], 2)} offset:{32 * t + par * STGB}", "sw")

    def readback(self, par, i, dst=None):
        dst = A_RB + 4 * i if dst is None else dst
        self.a.lgop(f"ds_read_b128 {ar(dst, 4)}, v{V_SR + i} offset:{par * STGB}", f"rb{i}")

    def mfma(self, P, s, t, buf):
        o = self.o
        if o.nomfma:
            return
        c = BIAS[t] if s == 0 else ACC[P][t]
        x = "a[252:255]" if o.zmfma else ar(xf(s, buf), 4)
        self.a.e(f"v_mfma_f32_16x16x32_bf16 {vr(ACC[P][t], 4)}, {wfrag(s, t)}, {x}, {vr(c, 4)}")

    def rr(self, i, dst):
        a = self.a
        if i == 0:
            a.e(f"v_add_u32 v{dst}, 16, v{V_LN}")
            a.e(f"v_lshrrev_b32 v{dst}, 6, v{dst}")
        elif i == 1:
            a.e(f"v_lshrrev_b32 v{dst}, 5, v{V_LN}")
            a.e(f"v_add_u32 v{dst}, 1, v{dst}")
        else:
            a.e(f"v_add_u32 v{dst}, 48, v{V_LN}")
            a.e(f"v_lshrrev_b32 v{dst}, 6, v{dst}")
            a.e(f"v_add_u32 v{dst}, 2, v{dst}")

    def setup_x_dma(self):
        a = self.a
        a.e(f"v_mul_u32_u24 v{V_T0}, 3072, v{V_WV}")
        for i in range(3):
            self.rr(i, V_T1)
            a.e(f"v_lshl_add_u32 v{V_T1}, v{V_WV}, 2, v{V_T1}")
            a.e(f"v_xor_b32 v{V_T1}, v{V_T1}, v{V_LN}")
            a.e(f"v_lshl_add_u32 v{V_DMA + i}, v{V_T1}, 4, v{V_T0}")

    def setup_w_dma(self):
        a = self.a
        t0, t1, t2 = V_TMP, V_TMP + 1, V_TMP + 2
        a.e(f"v_mul_u32_u24 v{V_T0}, 192, v{V_WV}")
        for i in range(3):
            a.e(f"v_add_u32 v{t0}, {64 * i}, v{V_LN}")
            a.e(f"v_mul_u32_u24 v{t1}, 171, v{t0}")
            a.e(f"v_lshrrev_b32 v{t1}, 11, v{t1}")
            a.e(f"v_mul_u32_u24 v{t2}, 12, v{t1}")
            a.e(f"v_sub_u32 v{t0}, v{t0}, v{t2}")
            a.e(f"v_bfe_u32 v{t2}, v{t1}, 3, 1")
            a.e(f"v_lshlrev_b32 v{t2}, 1, v{t2}")
            a.e(f"v_xor_b32 v{t0}, v{t0}, v{t2}")
            a.e(f"v_lshl_add_u32 v{t0}, v{t0}, 4, v{V_T0}")
            a.e(f"v_mul_u32_u24 v{t1}, {ROWB}, v{t1}")
            a.e(f"v_add_u32 v{t0}, v{t0}, v{t1}")
            a.e(f"v_subrev_u32 v{V_WD + i}, {1024 * i}, v{t0}")

    def setup_rest(self):
        a = self.a
        t0, t1 = V_T0, V_T1
        a.e(f"v_mul_u32_u24 v{t0}, 192, v{V_WV}")
        a.e(f"v_lshl_add_u32 v{V_BO}, v{V_G}, 3, v{t0}")
        a.e(f"s_mov_b32 s{SRD_B}, s{P_B}")
        a.e(f"s_and_b32 s{SRD_B + 1}, s{P_B + 1}, 0xffff")
        a.e(f"s_mov_b32 s{SRD_B + 2}, 768")
        a.e(f"s_mov_b32 s{SRD_B + 3}, 0x20000")
        for t in range(6):
            a.vmop(f"buffer_load_dwordx2 {ar(A_RB + 2 * t, 2)}, v{V_BO}, s[{SRD_B}:{SRD_B + 3}], 0 offen offset:{32 * t}", "bias")
        a.e(f"v_mul_u32_u24 v{t0}, {ROWB}, v{V_P}")
        for b in range(4):
            a.e(f"v_add_u32 v{t1}, {4 * b}, v{V_G}")
            a.e(f"v_xor_b32 v{t1}, v{t1}, v{V_P}")
            a.e(f"v_lshl_add_u32 v{V_XA + b}, v{t1}, 4, v{t0}")
        a.e(f"v_lshrrev_b32 v{t0}, 2, v{V_P}")
        a.e(f"v_lshl_add_u32 v{t0}, v{V_G}, 3, v{t0}")
        a.e(f"v_mul_u32_u24 v{t0}, 192, v{t0}")
        a.e(f"v_and_b32 v{t1}, 3, v{V_P}")
        a.e(f"v_lshl_add_u32 v{t0}, v{t1}, 3, v{t0}")
        a.e(f"v_mul_u32_u24 v{t1}, 6144, v{V_WV}")
        a.e(f"v_add_u32 v{t0}, v{t0}, v{t1}")
        a.e(f"v_add_u32 v{t0}, {self.LB}, v{t0}")
        a.e(f"v_and_b32 v{t1}, 1, v{V_G}")
        a.e(f"v_lshlrev_b32 v{t1}, 5, v{t1}")
        a.e(f"v_add_u32 v{V_TRE}, v{t0}, v{t1}")
        a.e(f"v_sub_u32 v{V_TRO}, v{t0}, v{t1}")
        a.e(f"v_add_u32 v{V_TRE2}, {2 * WBUF}, v{V_TRE}")
        a.e(f"v_add_u32 v{V_TRO2}, {2 * WBUF}, v{V_TRO}")
        a.e(f"v_mul_u32_u24 v{V_SW}, {STG_STRIDE}, v{V_P}")
        a.e(f"v_add_u32 v{V_SW}, v{V_SW}, v{V_BO}")
        a.e(f"v_add_u32 v{V_SW}, {self.STG}, v{V_SW}")
        a.e(f"v_mul_u32_u24 v{V_ST}, 3072, v{V_WV}")
        a.e(f"v_lshl_add_u32 v{V_ST}, v{V_LN}, 4, v{V_ST}")
        a.e(f"v_mul_u32_u24 v{t0}, {4 * STG_STRIDE}, v{V_WV}")
        a.e(f"v_add_u32 v{t0}, {self.STG}, v{t0}")
        for i in range(3):
            self.rr(i, t1)
            a.e(f"v_add_u32 v{t1}, v{t1}, v{V_LN}")
            a.e(f"v_lshl_add_u32 v{t1}, v{t1}, 4, v{t0}")
            a.e(f"v_add_u32 v{V_SR + i}, {1024 * i}, v{t1}")
        a.e(f"s_mov_b32 s{S_SIZE}, {0 if self.o.nold else XBYTES}")

    def bias_convert(self):
        a = self.a
        for d in range(12):
            a.e(f"v_accvgpr_read_b32 v{V_TMP + d}, a{A_RB + d}")
        for t in range(6):
            for h in range(2):
                a.e(f"v_lshlrev_b32 v{BIAS[t] + 2 * h}, 16, v{V_TMP + 2 * t + h}")
                a.e(f"v_and_b32 v{BIAS[t] + 2 * h + 1}, 0xffff0000, v{V_TMP + 2 * t + h}")

    def prologue(self, D, pre, xs, gname):
        o, a, R = self.o, self.a, self.R
        a.label(f"L_{gname}")
        self.iter_ops = self.iter_order()
        a.vm, a.lg = [], []
        self.ntile = 0
        npro = D + 2
        assert npro <= R
        assert 2 <= pre <= min(npro, R - 2)
        for _ in range(pre):
            self.prologue_tile(False)
        self.w_dma(0)
        self.setup_rest()

        def after_w(s, last_ok=True):
            for _ in range(xs[s]):
                if self.ntile < npro:
                    self.prologue_tile(s == 11)

        after_w(0)
        NB = self.NB
        for s in range(1, NB):
            self.w_dma(s)
            after_w(s)
        self.stamp(1)
        a.wait(vm="x1")
        a.e("s_barrier")
        self.xread_slot(0, 0, 0, "xf")
        self.xread_slot(0, 1, 1, "xf")
        a.wait(vm="w0")
        self.stamp(2)
        if o.stamps:
            a.e("s_waitcnt lgkmcnt(0)")
            a.lg = []
        for t in range(6):
            for h2 in range(2):
                self.w_tr(0, t, h2)
        a.wait(vm="bias")
        self.bias_convert()
        if o.zmfma:
            for i in range(4):
                a.e(f"v_accvgpr_write_b32 a{252 + i}, 0")
        a.wait(lg="all")
        for s in range(12):
            lds, vmem = [], []
            if s + 1 < 12:
                a.wait(vm=f"w{s + 1}")
                lds.append(lambda s=s: self.xread_slot(s + 1, 0, 0, "xf"))
                lds.append(lambda s=s: self.xread_slot(s + 1, 1, 1, "xf"))
                for t in range(6):
                    for h2 in range(2):
                        lds.append(lambda s=s, t=t, h2=h2: self.w_tr(s + 1, t, h2))
            else:
                while self.ntile < 3:
                    self.prologue_tile(True)
                a.wait(vm="x2")
                a.e("s_barrier")
                for k in range(12):
                    lds.append(lambda k=k: self.xread_slot(k, 0, 2, "xf"))
            early = min(npro, R - 2) if NB == 4 else npro
            if s + NB < 12:
                vmem += self.w_dma_ops(s + NB)
                for _ in range(xs[s + NB]):
                    if self.ntile + sum(1 for f in vmem if getattr(f, "tile", False)) < early:
                        f = lambda s=s: self.prologue_tile(s + NB == 11)
                        f.tile = True
                        vmem.append(f)
            elif s >= o.xlate and s < 11 and self.ntile < early:
                vmem.append(lambda: self.prologue_tile(True))
            slot = 0
            for n in range(2):
                for t in range(6):
                    self.mfma(n, s, t, n)
                    if s == 11:
                        lds.pop(0)()
                    else:
                        for _ in range(2):
                            if lds:
                                lds.pop(0)()
                        if vmem and slot % o.wgap == 0:
                            vmem.pop(0)()
                    slot += 1
            while lds:
                lds.pop(0)()
            while vmem:
                vmem.pop(0)()
            if o.itst:
                a.e("s_memrealtime s[74:75]")
                a.e("s_memtime s[78:79]")
                a.e("s_waitcnt lgkmcnt(0)")
                a.lg = [] if s < 11 else a.lg
                a.e("s_mov_b32 s76, m0")
                a.e(f"s_mov_b32 m0, {40 + s}")
                a.e("s_nop 0")
                a.e(f"v_writelane_b32 v{V_T0}, s74, m0")
                a.e(f"v_writelane_b32 v{V_T1}, s78, m0")
                a.e("s_mov_b32 m0, s76")
            if s < 11:
                a.wait(lg="all")
        while self.ntile < npro:
            self.prologue_tile(True)
        a.wait(lg="xf")
        a.e("s_nop 1")
        for t in range(6):
            self.cvt(0, t, 0)
            self.cvt(0, t, 1)
            self.swrite(0, t, 0)
        for b in range(4):
            a.e(f"v_add_u32 v{V_XA + b}, {3 * TILEB}, v{V_XA + b}")
        a.e(f"s_mov_b32 s{S_CUR}, {3 * TILEB}")
        a.e(f"s_mov_b32 s{S_T}, 2")
        if npro == R:
            a.e(f"s_mov_b32 s{S_DCUR}, 0")
        a.e(f"s_add_u32 m0, s{S_DCUR}, s{S_W3}")
        if not o.nost:
            a.e(f"s_mov_b32 s{SRD_O + 2}, {XBYTES}")
        self.stamp(3)
        pro_queue = list(a.vm)
        ops = self.iter_ops
        last_d = max(i for i, t in enumerate(ops) if t[0] == "d")
        NW = (len(ops) - 1 - last_d) + len(ops) * (D - 2)
        assert NW + len(ops) <= 63
        q = list(pro_queue)
        for t in range(2, NT):
            q = q[len(q) - NW:] if len(q) > NW else q
            assert f"x{t + 1}" not in q, f"iteration {t}: tile not covered"
            q += [f"x{t + D}" if x[0] == "d" else "st" for x in ops]
            assert len(q) <= 63
        return NW

    def long_positions(self, w):
        o = self.o
        return {name: o.lbase + o.lstep * k + o.lstag * w for k, name in enumerate(o.lorder)}

    def iter_order(self):
        orders = []
        for w in range(4):
            pos = self.long_positions(w)
            ev = [(pos[f"d{i}"], 0, f"d{i}") for i in range(3)] + [(pos[f"s{i}"], 1, f"s{i}") for i in range(3)]
            orders.append([t for _, _, t in sorted(ev)])
        assert all(x == orders[0] for x in orders)
        return orders[0]

    def iteration(self, P, D, w):
        o, a, R = self.o, self.a, self.R
        side = {m: [] for m in range(72)}
        load = {m: 0 for m in range(72)}
        pos = self.long_positions(w)
        for name, m in pos.items():
            assert 0 <= m < 72, (name, m)
            load[m] += 8
        load[71] += 4

        def at(m, f, kind=None):
            if kind is None or kind not in o.skip:
                side[m].append(f)

        def put(lo, hi, f, kind=None, cost=4):
            hi = min(hi, 71)
            assert lo <= hi, (lo, hi)
            best = min(range(lo, hi + 1), key=lambda m: (load[m] + cost > o.gapcap, load[m] if load[m] + cost > o.gapcap else 0, m))
            load[best] += cost
            at(best, f, kind)
            return best

        for i in range(3):
            at(pos[f"d{i}"], lambda i=i: self.dma(i, "d"), "dma")

            def st(i=i):
                a.wait(lg=f"rb{i}")
                self.store(i, "s", f"s{S_OOFF}")
            at(pos[f"s{i}"], st, "st")
        xpos = {}
        for s in range(12):
            lo = o.xstep * s
            xpos[s] = put(lo, lo + 4, lambda s=s: self.xread(s, 1 - P, f"xf{s}"), "xr")
        dlast = max(pos[f"d{i}"] for i in range(3))
        m = put(dlast + 1, 71, lambda: a.e(f"s_add_u32 s{S_DOFF}, s{S_DOFF}, {self.tstride}"))
        m = put(dlast + 1, 71, lambda: a.e(f"s_add_u32 s{S_DCUR}, s{S_DCUR}, {TILEB}"))
        m = put(m + 1, 71, lambda: (a.e(f"s_cmp_eq_u32 s{S_DCUR}, {R * TILEB}"), a.e(f"s_cselect_b32 s{S_DCUR}, 0, s{S_DCUR}")), cost=8)
        m = put(m + 1, 71, lambda: a.e(f"s_add_u32 m0, s{S_DCUR}, s{S_W3}"))
        mt = put(40, 60, lambda: a.e(f"s_add_u32 s{S_T}, s{S_T}, 1"))
        put(max(dlast, mt) + 1, 71, lambda: (a.e(f"s_cmp_lt_u32 s{S_T}, {NT - D}"), a.e(f"s_cselect_b32 s{SRD_X + 2}, s{S_SIZE}, 0")), cost=8)
        sfirst = min(pos[f"s{i}"] for i in range(3))
        put(0, sfirst - 1, lambda: a.e(f"s_add_u32 s{S_OOFF}, s{S_OOFF}, {self.tstride}"))
        prev = -1
        for i in range(3):
            hi = pos[f"s{i}"] - o.rbdist
            prev = put(max(prev + 1, hi - 8, 0), max(hi, prev + 1), lambda i=i: self.readback(P, i), "rb")
        prev = o.cpos - 1
        for t in range(6):
            lo = max(prev + 1, o.cpos + o.cstep * t)
            prev = put(lo, 71, lambda t=t: self.cvt(1 - P, t, 0), "cvt")
            prev = put(prev + 1, 71, lambda t=t: self.cvt(1 - P, t, 1), "cvt")
            prev = put(prev + 1, 71, lambda t=t: self.swrite(1 - P, t, 1 - P), "sw", cost=o.swcost)
        last_use = {b: xpos[8 + b] for b in range(4)}
        first_upd = last_use[0] + 1
        m = put(8, first_upd - 6, lambda: a.e(f"s_add_u32 s{S_NXT}, s{S_CUR}, {TILEB}"))
        m = put(m + 1, first_upd - 4, lambda: (a.e(f"s_cmp_eq_u32 s{S_NXT}, {R * TILEB}"), a.e(f"s_cselect_b32 s{S_NXT}, 0, s{S_NXT}")), cost=8)
        m = put(m + 1, first_upd - 2, lambda: a.e(f"s_sub_u32 s{S_XD}, s{S_NXT}, s{S_CUR}"))
        m = put(m + 1, first_upd - 1, lambda: a.e(f"s_mov_b32 s{S_CUR}, s{S_NXT}"))
        for b in range(4):
            lo = max(last_use[b] + 1, m + 1)
            put(lo, 71, lambda b=b: a.e(f"v_add_u32 v{V_XA + b}, s{S_XD}, v{V_XA + b}"))

        for m in range(72):
            t, s = m // 12, m % 12
            self.mfma(P, s, t, P)
            for f in side[m]:
                f()

    def loop(self, D, NW):
        o, a = self.o, self.a
        nvar = 4 if o.lstag else 1
        for w in range(1, nvar):
            a.e(f"s_cmp_eq_u32 s{S_WAVE}, {w}")
            a.e(f"s_cbranch_scc1 L_loop{w}")
        for w in range(nvar):
            a.lines.append(".p2align 6")
            a.label(f"L_loop{w}")
            for P in range(2):
                a.vm = []
                if o.itst:
                    a.e("s_memrealtime s[74:75]")
                    a.e("s_memtime s[78:79]")
                a.e(f"s_waitcnt vmcnt({NW}) lgkmcnt(0)")
                a.lg = []
                if o.itst:
                    a.e("s_mov_b32 s76, m0")
                    a.e(f"s_mov_b32 m0, s{S_T}")
                    a.e("s_nop 0")
                    a.e(f"v_writelane_b32 v{V_T0}, s74, m0")
                    a.e(f"v_writelane_b32 v{V_T1}, s78, m0")
                    a.e("s_mov_b32 m0, s76")
                if "bar" not in o.skip:
                    a.e("s_barrier")
                self.iteration(P, D, w)
            a.e(f"s_cmp_lt_u32 s{S_T}, {NT}")
            a.e(f"s_cbranch_scc1 L_loop{w}")
            if w + 1 < nvar:
                a.e("s_branch L_drain")

    def drain(self):
        o, a = self.o, self.a
        a.label("L_drain")
        a.vm, a.lg = [], []
        a.e("s_waitcnt lgkmcnt(0)")
        a.e("s_barrier")
        a.e(f"s_add_u32 s{S_OOFF}, s{S_OOFF}, {self.tstride}")
        a.e("s_nop 4")
        for i in range(3):
            self.readback(0, i)
        for t in range(6):
            self.cvt(1, t, 0)
            self.cvt(1, t, 1)
            self.swrite(1, t, 1)
        for i in range(3):
            a.wait(lg=f"rb{i}")
            self.store(i, "s", f"s{S_OOFF}")
        a.e(f"s_add_u32 s{S_OOFF}, s{S_OOFF}, {self.tstride}")
        a.e("s_waitcnt lgkmcnt(0)")
        a.lg = []
        a.e("s_barrier")
        self.stamp(4)
        for i in range(3):
            a.e(f"ds_read_b128 {ar(A_XF + 4 * i, 4)}, v{V_SR + i} offset:{STGB}")
        for i in range(3):
            a.e(f"s_waitcnt lgkmcnt({0 if o.stamps else 2 - i})")
            a.e(f"buffer_store_dwordx4 {ar(A_XF + 4 * i, 4)}, v{V_ST}, s[{SRD_O}:{SRD_O + 3}], s{S_OOFF} offen offset:{1024 * i}{self.stf}")

    def build(self):
        o, a = self.o, self.a
        a.lines.append(f"""; 1x1 convolution as a GEMM: out[147456,384] = x[147456,384] @ w[384,384] + b, bf16.
; @launch grid=({NWG},1,1) block=(256,1,1) lds={self.lds}
.amdgcn_target "amdgcn-amd-amdhsa--gfx950"
.text
.globl {NAME}_kernel
.p2align 8
.type {NAME}_kernel,@function
{NAME}_kernel:""")
        a.e("s_load_dwordx8 s[4:11], s[0:1], 0")
        if o.stamps:
            a.e(f"s_load_dwordx2 s[{S_DBG}:{S_DBG + 1}], s[0:1], 40")
        self.stamp(0)
        if o.clk:
            a.e("s_memtime s[70:71]")
        a.e(f"s_cmp_ge_u32 s2, {NWG}")
        a.e("s_cbranch_scc1 L_done")
        a.e(f"v_lshrrev_b32 v{V_WV}, 6, v0")
        a.e(f"v_and_b32 v{V_LN}, 63, v0")
        a.e(f"v_readfirstlane_b32 s{S_WAVE}, v{V_WV}")
        a.e(f"v_and_b32 v{V_P}, 15, v0")
        a.e(f"v_bfe_u32 v{V_G}, v0, 4, 2")
        self.setup_x_dma()
        if o.contig:
            a.e(f"s_mul_i32 s{S_DOFF}, s2, {NT * TILEB}")
        else:
            a.e(f"s_mul_i32 s{S_DOFF}, s2, {TILEB}")
        a.e(f"s_sub_u32 s{S_OOFF}, s{S_DOFF}, {self.tstride}")
        a.e(f"s_mul_i32 s{S_W3}, s{S_WAVE}, 3072")
        a.e(f"s_mul_i32 s{S_WM0}, s{S_WAVE}, 6144")
        a.e(f"s_mov_b32 s{S_DCUR}, 0")
        if o.wrot:
            a.e(f"s_lshr_b32 s{S_ROT}, s2, 3")
            a.e(f"s_mul_i32 s{S_TMP}, s{S_ROT}, {(65536 + o.wrot - 1) // o.wrot}")
            a.e(f"s_lshr_b32 s{S_TMP}, s{S_TMP}, 16")
            a.e(f"s_mul_i32 s{S_TMP}, s{S_TMP}, {o.wrot}")
            a.e(f"s_sub_u32 s{S_ROT}, s{S_ROT}, s{S_TMP}")
            a.e(f"s_mul_i32 s{S_ROT}, s{S_ROT}, {(12 // o.wrot) * WBUF}")
        for srd, size in ((SRD_X, 0 if o.nold else XBYTES), (SRD_W, 384 * 768), (SRD_O, 0)):
            a.e(f"s_mov_b32 s{srd + 2}, {size}")
            a.e(f"s_mov_b32 s{srd + 3}, 0x20000")
        self.setup_w_dma()
        a.e("s_waitcnt lgkmcnt(0)")
        for srd, ptr in ((SRD_X, P_X), (SRD_W, P_W), (SRD_O, P_O)):
            a.e(f"s_mov_b32 s{srd}, s{ptr}")
            a.e(f"s_and_b32 s{srd + 1}, s{ptr + 1}, 0xffff")
        D = o.D
        if len(o.groups) == 2:
            a.e(f"s_bitcmp1_b32 s2, {o.gbit}")
            a.e("s_cbranch_scc1 L_g1")
        for gi, (pre, xs) in enumerate(o.groups):
            NW = self.prologue(D, pre, xs, f"g{gi}")
            if gi + 1 < len(o.groups):
                a.e("s_branch L_enter")
        a.label("L_enter")
        self.loop(D, NW)
        self.drain()
        if o.stamps:
            self.stamp_out()
        a.label("L_done")
        a.e("s_endpgm")
        a.lines.append(f""".section .rodata,"a"
.p2align 6
.amdhsa_kernel {NAME}_kernel
  .amdhsa_next_free_vgpr 512
  .amdhsa_next_free_sgpr 96
  .amdhsa_accum_offset 256
  .amdhsa_group_segment_fixed_size 0
  .amdhsa_kernarg_size 48
  .amdhsa_user_sgpr_count 2
  .amdhsa_user_sgpr_kernarg_segment_ptr 1
  .amdhsa_system_sgpr_workgroup_id_x 1
.end_amdhsa_kernel""")
        return "\n".join(a.lines) + "\n"

    def stamp_out(self):
        o, a = self.o, self.a
        a.e("s_waitcnt vmcnt(0)")
        self.stamp(5)
        if o.clk:
            a.e("s_memtime s[72:73]")
        a.e("s_waitcnt lgkmcnt(0)")
        n = self.nstamp
        if o.clk:
            a.e("s_sub_u32 s72, s72, s70")
            a.e(f"s_mov_b32 s{S_ST + 2 * n}, s72")
            n += 1
        a.e(f"s_cmp_lg_u32 s{S_WAVE}, 0")
        a.e("s_cbranch_scc1 L_done")
        a.e(f"s_mov_b32 s{SRD_D}, s{S_DBG}")
        a.e(f"s_and_b32 s{SRD_D + 1}, s{S_DBG + 1}, 0xffff")
        a.e(f"s_mov_b32 s{SRD_D + 2}, {NWG * 64}")
        a.e(f"s_mov_b32 s{SRD_D + 3}, 0x20000")
        a.e(f"v_mov_b32 v{V_WV}, 0")
        a.e(f"s_lshl_b32 s{S_TMP}, s2, 6")
        for i in range(n):
            a.e(f"v_mov_b32 v{V_LN}, s{S_ST + 2 * i}")
            a.e(f"buffer_store_dword v{V_LN}, v{V_WV}, s[{SRD_D}:{SRD_D + 3}], s{S_TMP} offen offset:{4 * i}")
        if o.itst:
            a.e(f"s_mov_b32 s{SRD_D + 2}, {NWG * 64 + NWG * 512}")
            a.e(f"s_lshl_b32 s{S_NXT}, s2, 9")
            a.e(f"s_add_u32 s{S_NXT}, s{S_NXT}, {NWG * 64}")
            a.e(f"v_mbcnt_lo_u32_b32 v{V_TMP}, -1, 0")
            a.e(f"v_mbcnt_hi_u32_b32 v{V_TMP}, -1, v{V_TMP}")
            a.e(f"v_lshlrev_b32 v{V_TMP}, 2, v{V_TMP}")
            a.e(f"buffer_store_dword v{V_T0}, v{V_TMP}, s[{SRD_D}:{SRD_D + 3}], s{S_NXT} offen")
            a.e(f"buffer_store_dword v{V_T1}, v{V_TMP}, s[{SRD_D}:{SRD_D + 3}], s{S_NXT} offen offset:256")
        a.e(f"s_getreg_b32 s{S_T}, hwreg(HW_REG_XCC_ID)")
        a.e(f"v_mov_b32 v{V_LN}, s{S_T}")
        a.e(f"buffer_store_dword v{V_LN}, v{V_WV}, s[{SRD_D}:{SRD_D + 3}], s{S_TMP} offen offset:60")


FLAGS = ("nomfma", "zmfma", "contig", "stamps", "nost", "nold", "clk", "itst")


def ints(s):
    return [int(x) for x in s.split(",")]


def parse(argv):
    p = argparse.ArgumentParser()
    p.add_argument("-o", default="-")
    p.add_argument("--R", type=int, default=7)
    p.add_argument("--D", type=int, default=3)
    p.add_argument("--ld", default="nt")
    p.add_argument("--st", default="sc0 sc1")
    p.add_argument("--wf", default="")
    p.add_argument("--groups", default="2:0,0,0,0,0,0,0,1,0,0,0,0")
    p.add_argument("--gbit", type=int, default=3)
    p.add_argument("--xlate", type=int, default=8)
    p.add_argument("--wgap", type=int, default=2)
    p.add_argument("--nb", type=int, default=4)
    p.add_argument("--wrot", type=int, default=0)
    p.add_argument("--lorder", default="d0,d1,d2,s0,s1,s2")
    p.add_argument("--lbase", type=int, default=1)
    p.add_argument("--lstep", type=int, default=12)
    p.add_argument("--lstag", type=int, default=2)
    p.add_argument("--gapcap", type=int, default=4)
    p.add_argument("--rbdist", type=int, default=10)
    p.add_argument("--cpos", type=int, default=8)
    p.add_argument("--cstep", type=int, default=8)
    p.add_argument("--swcost", type=int, default=4)
    p.add_argument("--xstep", type=int, default=5)
    p.add_argument("--skip", default="")
    for f in FLAGS:
        p.add_argument("--" + f, action="store_true")
    o = p.parse_args(argv)
    gs = []
    for g in o.groups.split("/"):
        f = g.split(":")
        gs.append((int(f[0]), ints(f[1]) if len(f) > 1 else [0] * 12))
    o.groups = gs
    o.lorder = o.lorder.split(",")
    o.skip = set(o.skip.split(",")) if o.skip else set()
    return o


if __name__ == "__main__":
    o = parse(sys.argv[1:])
    text = Gen(o).build()
    if o.o == "-":
        sys.stdout.write(text)
    else:
        open(o.o, "w").write(text)
```

```python
import argparse
import sys

from gen2 import Asm, ar, vr

NAME = "standalone__standard_2d_1d_3d_conv__vision"
ROWB = 768
TILEB = 16 * ROWB
NWG = 256
NT = 36
XBYTES = 147456 * ROWB
STG_STRIDE = 784
STGB = 16 * STG_STRIDE
WBUF = 32 * ROWB

P_X, P_W, P_B, P_O = 4, 6, 8, 10
SRD_X, SRD_W, SRD_B, SRD_O = 12, 16, 20, 24
S_WAVE = 28
S_T = 29
S_DOFF = 30
S_OOFF = 31
S_WM0 = 32
S_XD = 33
S_CUR = 34
S_KOFF = 35
S_NXT = 38
S_ROT = 36
S_TMP = 39
S_SIZE = 40
S_W3 = 41
S_DCUR = 42
S_DBG = 44
S_ST = 46
SRD_D = 64

V_XA = 0
V_DMA = 4
V_WD = 7
V_TRE, V_TRO = 10, 11
V_SW = 12
V_SR = 13
V_ST = 16
V_BO = 17
V_WV, V_LN, V_P, V_G = 18, 19, 20, 21
V_T0, V_T1 = 22, 23
BIAS = [24 + 4 * t for t in range(6)]
ACC = [[48 + 4 * t for t in range(6)], [72 + 4 * t for t in range(6)]]
V_W = 96
V_TMP = 240
V_TRE2, V_TRO2 = 252, 253

A_W = 0
A_XF = 144
A_RB = 240


def wreg(s, t):
    return ("a", A_W + 24 * s + 4 * t) if s < 6 else ("v", V_W + 24 * (s - 6) + 4 * t)


def wfrag(s, t):
    k, b = wreg(s, t)
    return f"{k}[{b}:{b + 3}]"


def xf(s, buf):
    return A_XF + 48 * buf + 4 * s


class Gen:
    def __init__(self, o):
        self.o = o
        self.a = Asm()
        self.R = o.R
        self.WB = o.R * TILEB
        self.STG = self.WB
        self.lds = self.WB + 3 * WBUF
        assert self.lds <= 163840
        self.tstride = TILEB if o.contig else (32 * TILEB if o.xcontig else NWG * TILEB)
        if o.xblk:
            self.tstride = NWG * TILEB
        self.ldf = (" " + o.ld) if o.ld else ""
        self.stf = (" " + o.st) if o.st else ""
        self.wf = (" " + o.wf) if o.wf else ""
        self.nstamp = 0
        self.NB = o.nb
        self.LB = (o.R - 2) * TILEB
        self.wbase = [self.WB, self.WB + WBUF, self.WB + 2 * WBUF, self.LB]

    def wbuf(self, s):
        return self.wbase[s % self.NB]

    def stamp(self, i):
        if self.o.stamps:
            self.a.e(f"s_memrealtime s[{S_ST + 2 * i}:{S_ST + 2 * i + 1}]")
            self.nstamp = max(self.nstamp, i + 1)

    def dma(self, i, tag):
        self.a.vmop(f"buffer_load_dwordx4 v{V_DMA + i}, s[{SRD_X}:{SRD_X + 3}], s{S_DOFF} offen offset:{1024 * i}{self.ldf} lds", tag)

    def store(self, i, tag, soff, src=None):
        src = A_RB + 4 * i if src is None else src
        self.a.vmop(f"buffer_store_dwordx4 {ar(src, 4)}, v{V_ST}, s[{SRD_O}:{SRD_O + 3}], {soff} offen offset:{1024 * i}{self.stf}", tag)

    def prologue_tile(self, with_dummy):
        a = self.a
        t = self.ntile
        self.ntile += 1
        a.e(f"s_add_u32 m0, s{S_DCUR}, s{S_W3}")
        a.e(f"s_add_u32 s{S_DCUR}, s{S_DCUR}, {TILEB}")
        if with_dummy:
            for tag in self.iter_ops:
                if tag[0] == "d":
                    self.dma(int(tag[1]), f"x{t}")
                else:
                    self.store(int(tag[1]), "dummy", "0")
        else:
            for i in range(3):
                self.dma(i, f"x{t}")
        a.e(f"s_add_u32 s{S_DOFF}, s{S_DOFF}, {self.tstride}")

    def koff(self, s, h):
        a = self.a
        if not self.o.wrot:
            a.e(f"s_mov_b32 s{S_KOFF}, {s * WBUF + h * 16 * ROWB}")
            return
        a.e(f"s_add_u32 s{S_KOFF}, s{S_ROT}, {s * WBUF}")
        a.e(f"s_cmp_ge_u32 s{S_KOFF}, {12 * WBUF}")
        a.e(f"s_cselect_b32 s{S_TMP}, {12 * WBUF}, 0")
        a.e(f"s_sub_u32 s{S_KOFF}, s{S_KOFF}, s{S_TMP}")
        if h:
            a.e(f"s_add_u32 s{S_KOFF}, s{S_KOFF}, {16 * ROWB}")

    def w_dma(self, s):
        a = self.a
        for h in range(2):
            a.e(f"s_add_u32 m0, s{S_WM0}, {self.wbuf(s) + h * 3072}")
            self.koff(s, h)
            for i in range(3):
                a.vmop(f"buffer_load_dwordx4 v{V_WD + i}, s[{SRD_W}:{SRD_W + 3}], s{S_KOFF} offen offset:{1024 * i}{self.wf} lds", f"w{s}")

    def w_dma_ops(self, s):
        a = self.a
        ops = []
        for h in range(2):
            for i in range(3):
                def f(h=h, i=i):
                    if i == 0:
                        a.e(f"s_add_u32 m0, s{S_WM0}, {self.wbuf(s) + h * 3072}")
                        self.koff(s, h)
                    a.vmop(f"buffer_load_dwordx4 v{V_WD + i}, s[{SRD_W}:{SRD_W + 3}], s{S_KOFF} offen offset:{1024 * i}{self.wf} lds", f"w{s}")
                ops.append(f)
        return ops

    def w_tr(self, s, t, h2):
        k, b = wreg(s, t)
        rel = self.wbuf(s) - self.LB
        hi = rel >= 2 * WBUF
        base = (V_TRO2 if t & 1 else V_TRE2) if hi else (V_TRO if t & 1 else V_TRE)
        off = rel - (2 * WBUF if hi else 0) + 768 * h2 + 32 * t
        assert off < 65536
        self.a.lgop(f"ds_read_b64_tr_b16 {k}[{b + 2 * h2}:{b + 2 * h2 + 1}], v{base} offset:{off}", f"tr{s}")

    def xread(self, s, buf, tag):
        self.a.lgop(f"ds_read_b128 {ar(xf(s, buf), 4)}, v{V_XA + (s & 3)} offset:{(s >> 2) * 256}", tag)

    def xread_slot(self, s, buf, slot, tag):
        self.a.lgop(f"ds_read_b128 {ar(xf(s, buf), 4)}, v{V_XA + (s & 3)} offset:{slot * TILEB + (s >> 2) * 256}", tag)

    def cvt(self, P, t, h):
        r = ACC[P][t]
        self.a.e(f"v_cvt_pk_bf16_f32 v{r + h}, v{r + 2 * h}, v{r + 2 * h + 1}")

    def swrite(self, P, t, par):
        self.a.lgop(f"ds_write_b64 v{V_SW}, {vr(ACC[P][t], 2)} offset:{32 * t + par * STGB}", "sw")

    def readback(self, par, i, dst=None):
        dst = A_RB + 4 * i if dst is None else dst
        self.a.lgop(f"ds_read_b128 {ar(dst, 4)}, v{V_SR + i} offset:{par * STGB}", f"rb{i}")

    def mfma(self, P, s, t, buf):
        o = self.o
        if o.nomfma:
            return
        c = BIAS[t] if s == 0 else ACC[P][t]
        x = "a[252:255]" if o.zmfma else ar(xf(s, buf), 4)
        self.a.e(f"v_mfma_f32_16x16x32_bf16 {vr(ACC[P][t], 4)}, {wfrag(s, t)}, {x}, {vr(c, 4)}")

    def rr(self, i, dst):
        a = self.a
        if i == 0:
            a.e(f"v_add_u32 v{dst}, 16, v{V_LN}")
            a.e(f"v_lshrrev_b32 v{dst}, 6, v{dst}")
        elif i == 1:
            a.e(f"v_lshrrev_b32 v{dst}, 5, v{V_LN}")
            a.e(f"v_add_u32 v{dst}, 1, v{dst}")
        else:
            a.e(f"v_add_u32 v{dst}, 48, v{V_LN}")
            a.e(f"v_lshrrev_b32 v{dst}, 6, v{dst}")
            a.e(f"v_add_u32 v{dst}, 2, v{dst}")

    def setup_x_dma(self):
        a = self.a
        a.e(f"v_mul_u32_u24 v{V_T0}, 3072, v{V_WV}")
        for i in range(3):
            self.rr(i, V_T1)
            a.e(f"v_lshl_add_u32 v{V_T1}, v{V_WV}, 2, v{V_T1}")
            a.e(f"v_xor_b32 v{V_T1}, v{V_T1}, v{V_LN}")
            a.e(f"v_lshl_add_u32 v{V_DMA + i}, v{V_T1}, 4, v{V_T0}")

    def setup_w_dma(self):
        a = self.a
        t0, t1, t2 = V_TMP, V_TMP + 1, V_TMP + 2
        a.e(f"v_mul_u32_u24 v{V_T0}, 192, v{V_WV}")
        for i in range(3):
            a.e(f"v_add_u32 v{t0}, {64 * i}, v{V_LN}")
            a.e(f"v_mul_u32_u24 v{t1}, 171, v{t0}")
            a.e(f"v_lshrrev_b32 v{t1}, 11, v{t1}")
            a.e(f"v_mul_u32_u24 v{t2}, 12, v{t1}")
            a.e(f"v_sub_u32 v{t0}, v{t0}, v{t2}")
            a.e(f"v_bfe_u32 v{t2}, v{t1}, 3, 1")
            a.e(f"v_lshlrev_b32 v{t2}, 1, v{t2}")
            a.e(f"v_xor_b32 v{t0}, v{t0}, v{t2}")
            a.e(f"v_lshl_add_u32 v{t0}, v{t0}, 4, v{V_T0}")
            a.e(f"v_mul_u32_u24 v{t1}, {ROWB}, v{t1}")
            a.e(f"v_add_u32 v{t0}, v{t0}, v{t1}")
            a.e(f"v_subrev_u32 v{V_WD + i}, {1024 * i}, v{t0}")

    def setup_rest(self):
        a = self.a
        t0, t1 = V_T0, V_T1
        a.e(f"v_mul_u32_u24 v{t0}, 192, v{V_WV}")
        a.e(f"v_lshl_add_u32 v{V_BO}, v{V_G}, 3, v{t0}")
        a.e(f"s_mov_b32 s{SRD_B}, s{P_B}")
        a.e(f"s_and_b32 s{SRD_B + 1}, s{P_B + 1}, 0xffff")
        a.e(f"s_mov_b32 s{SRD_B + 2}, 768")
        a.e(f"s_mov_b32 s{SRD_B + 3}, 0x20000")
        for t in range(6):
            a.vmop(f"buffer_load_dwordx2 {ar(A_RB + 2 * t, 2)}, v{V_BO}, s[{SRD_B}:{SRD_B + 3}], 0 offen offset:{32 * t}", "bias")
        a.e(f"v_mul_u32_u24 v{t0}, {ROWB}, v{V_P}")
        for b in range(4):
            a.e(f"v_add_u32 v{t1}, {4 * b}, v{V_G}")
            a.e(f"v_xor_b32 v{t1}, v{t1}, v{V_P}")
            a.e(f"v_lshl_add_u32 v{V_XA + b}, v{t1}, 4, v{t0}")
        a.e(f"v_lshrrev_b32 v{t0}, 2, v{V_P}")
        a.e(f"v_lshl_add_u32 v{t0}, v{V_G}, 3, v{t0}")
        a.e(f"v_mul_u32_u24 v{t0}, 192, v{t0}")
        a.e(f"v_and_b32 v{t1}, 3, v{V_P}")
        a.e(f"v_lshl_add_u32 v{t0}, v{t1}, 3, v{t0}")
        a.e(f"v_mul_u32_u24 v{t1}, 6144, v{V_WV}")
        a.e(f"v_add_u32 v{t0}, v{t0}, v{t1}")
        a.e(f"v_add_u32 v{t0}, {self.LB}, v{t0}")
        a.e(f"v_and_b32 v{t1}, 1, v{V_G}")
        a.e(f"v_lshlrev_b32 v{t1}, 5, v{t1}")
        a.e(f"v_add_u32 v{V_TRE}, v{t0}, v{t1}")
        a.e(f"v_sub_u32 v{V_TRO}, v{t0}, v{t1}")
        a.e(f"v_add_u32 v{V_TRE2}, {2 * WBUF}, v{V_TRE}")
        a.e(f"v_add_u32 v{V_TRO2}, {2 * WBUF}, v{V_TRO}")
        a.e(f"v_mul_u32_u24 v{V_SW}, {STG_STRIDE}, v{V_P}")
        a.e(f"v_add_u32 v{V_SW}, v{V_SW}, v{V_BO}")
        a.e(f"v_add_u32 v{V_SW}, {self.STG}, v{V_SW}")
        a.e(f"v_mul_u32_u24 v{V_ST}, 3072, v{V_WV}")
        a.e(f"v_lshl_add_u32 v{V_ST}, v{V_LN}, 4, v{V_ST}")
        a.e(f"v_mul_u32_u24 v{t0}, {4 * STG_STRIDE}, v{V_WV}")
        a.e(f"v_add_u32 v{t0}, {self.STG}, v{t0}")
        for i in range(3):
            self.rr(i, t1)
            a.e(f"v_add_u32 v{t1}, v{t1}, v{V_LN}")
            a.e(f"v_lshl_add_u32 v{t1}, v{t1}, 4, v{t0}")
            a.e(f"v_add_u32 v{V_SR + i}, {1024 * i}, v{t1}")
        a.e(f"s_mov_b32 s{S_SIZE}, {0 if self.o.nold else XBYTES}")

    def bias_convert(self):
        a = self.a
        for d in range(12):
            a.e(f"v_accvgpr_read_b32 v{V_TMP + d}, a{A_RB + d}")
        for t in range(6):
            for h in range(2):
                a.e(f"v_lshlrev_b32 v{BIAS[t] + 2 * h}, 16, v{V_TMP + 2 * t + h}")
                a.e(f"v_and_b32 v{BIAS[t] + 2 * h + 1}, 0xffff0000, v{V_TMP + 2 * t + h}")

    def prologue(self, D, pre, xs, gname):
        o, a, R = self.o, self.a, self.R
        a.label(f"L_{gname}")
        self.iter_ops = self.iter_order()
        a.vm, a.lg = [], []
        self.ntile = 0
        npro = D + 2
        assert npro <= R
        assert 2 <= pre <= min(npro, R - 2)
        for _ in range(pre):
            self.prologue_tile(False)
        self.w_dma(0)
        self.setup_rest()

        def after_w(s, last_ok=True):
            for _ in range(xs[s]):
                if self.ntile < npro:
                    self.prologue_tile(s == 11)

        after_w(0)
        NB = self.NB
        for s in range(1, NB):
            self.w_dma(s)
            after_w(s)
        self.stamp(1)
        a.wait(vm="x1")
        a.e("s_barrier")
        self.xread_slot(0, 0, 0, "xf")
        self.xread_slot(0, 1, 1, "xf")
        a.wait(vm="w0")
        self.stamp(2)
        if o.stamps:
            a.e("s_waitcnt lgkmcnt(0)")
            a.lg = []
        for t in range(6):
            for h2 in range(2):
                self.w_tr(0, t, h2)
        a.wait(vm="bias")
        self.bias_convert()
        if o.zmfma:
            for i in range(4):
                a.e(f"v_accvgpr_write_b32 a{252 + i}, 0")
        a.wait(lg="all")
        for s in range(12):
            lds, vmem = [], []
            if s + 1 < 12:
                a.wait(vm=f"w{s + 1}")
                lds.append(lambda s=s: self.xread_slot(s + 1, 0, 0, "xf"))
                lds.append(lambda s=s: self.xread_slot(s + 1, 1, 1, "xf"))
                for t in range(6):
                    for h2 in range(2):
                        lds.append(lambda s=s, t=t, h2=h2: self.w_tr(s + 1, t, h2))
            else:
                while self.ntile < 3:
                    self.prologue_tile(True)
                a.wait(vm="x2")
                a.e("s_barrier")
                for k in range(12):
                    lds.append(lambda k=k: self.xread_slot(k, 0, 2, "xf"))
            early = min(npro, R - 2) if NB == 4 else npro
            if s + NB < 12:
                vmem += self.w_dma_ops(s + NB)
                for _ in range(xs[s + NB]):
                    if self.ntile + sum(1 for f in vmem if getattr(f, "tile", False)) < early:
                        f = lambda s=s: self.prologue_tile(s + NB == 11)
                        f.tile = True
                        vmem.append(f)
            elif s >= o.xlate and s < 11 and self.ntile < early:
                vmem.append(lambda: self.prologue_tile(True))
            slot = 0
            for n in range(2):
                for t in range(6):
                    self.mfma(n, s, t, n)
                    if s == 11:
                        lds.pop(0)()
                    else:
                        for _ in range(2):
                            if lds:
                                lds.pop(0)()
                        if vmem and slot % o.wgap == 0:
                            vmem.pop(0)()
                    slot += 1
            while lds:
                lds.pop(0)()
            while vmem:
                vmem.pop(0)()
            if o.itst:
                a.e("s_memrealtime s[74:75]")
                a.e("s_memtime s[78:79]")
                a.e("s_waitcnt lgkmcnt(0)")
                a.lg = [] if s < 11 else a.lg
                a.e("s_mov_b32 s76, m0")
                a.e(f"s_mov_b32 m0, {40 + s}")
                a.e("s_nop 0")
                a.e(f"v_writelane_b32 v{V_T0}, s74, m0")
                a.e(f"v_writelane_b32 v{V_T1}, s78, m0")
                a.e("s_mov_b32 m0, s76")
            if s < 11:
                a.wait(lg="all")
        while self.ntile < npro:
            self.prologue_tile(True)
        a.wait(lg="xf")
        a.e("s_nop 1")
        for t in range(6):
            self.cvt(0, t, 0)
            self.cvt(0, t, 1)
            self.swrite(0, t, 0)
        for b in range(4):
            a.e(f"v_add_u32 v{V_XA + b}, {3 * TILEB}, v{V_XA + b}")
        a.e(f"s_mov_b32 s{S_CUR}, {3 * TILEB}")
        a.e(f"s_mov_b32 s{S_T}, 2")
        if npro == R:
            a.e(f"s_mov_b32 s{S_DCUR}, 0")
        a.e(f"s_add_u32 m0, s{S_DCUR}, s{S_W3}")
        if not o.nost:
            a.e(f"s_mov_b32 s{SRD_O + 2}, {XBYTES}")
        self.stamp(3)
        pro_queue = list(a.vm)
        ops = self.iter_ops
        last_d = max(i for i, t in enumerate(ops) if t[0] == "d")
        NW = (len(ops) - 1 - last_d) + len(ops) * (D - 2)
        assert NW + len(ops) <= 63
        q = list(pro_queue)
        for t in range(2, NT):
            q = q[len(q) - NW:] if len(q) > NW else q
            assert f"x{t + 1}" not in q, f"iteration {t}: tile not covered"
            q += [f"x{t + D}" if x[0] == "d" else "st" for x in ops]
            assert len(q) <= 63
        return NW

    def long_positions(self, w):
        o = self.o
        return {name: o.lbase + o.lstep * k + o.lstag * w for k, name in enumerate(o.lorder)}

    def iter_order(self):
        orders = []
        for w in range(4):
            pos = self.long_positions(w)
            ev = [(pos[f"d{i}"], 0, f"d{i}") for i in range(3)] + [(pos[f"s{i}"], 1, f"s{i}") for i in range(3)]
            orders.append([t for _, _, t in sorted(ev)])
        assert all(x == orders[0] for x in orders)
        return orders[0]

    def iteration(self, P, D, w):
        o, a, R = self.o, self.a, self.R
        side = {m: [] for m in range(72)}
        load = {m: 0 for m in range(72)}
        pos = self.long_positions(w)
        for name, m in pos.items():
            assert 0 <= m < 72, (name, m)
            load[m] += 8
        load[71] += 4

        def at(m, f, kind=None):
            if kind is None or kind not in o.skip:
                side[m].append(f)

        def put(lo, hi, f, kind=None, cost=4):
            hi = min(hi, 71)
            assert lo <= hi, (lo, hi)
            best = min(range(lo, hi + 1), key=lambda m: (load[m] + cost > o.gapcap, load[m] if load[m] + cost > o.gapcap else 0, m))
            load[best] += cost
            at(best, f, kind)
            return best

        for i in range(3):
            at(pos[f"d{i}"], lambda i=i: self.dma(i, "d"), "dma")

            def st(i=i):
                a.wait(lg=f"rb{i}")
                self.store(i, "s", f"s{S_OOFF}")
            at(pos[f"s{i}"], st, "st")
        xpos = {}
        for s in range(12):
            lo = o.xstep * s
            xpos[s] = put(lo, lo + 4, lambda s=s: self.xread(s, 1 - P, f"xf{s}"), "xr")
        dlast = max(pos[f"d{i}"] for i in range(3))
        m = put(dlast + 1, 71, lambda: a.e(f"s_add_u32 s{S_DOFF}, s{S_DOFF}, {self.tstride}"))
        m = put(dlast + 1, 71, lambda: a.e(f"s_add_u32 s{S_DCUR}, s{S_DCUR}, {TILEB}"))
        m = put(m + 1, 71, lambda: (a.e(f"s_cmp_eq_u32 s{S_DCUR}, {R * TILEB}"), a.e(f"s_cselect_b32 s{S_DCUR}, 0, s{S_DCUR}")), cost=8)
        m = put(m + 1, 71, lambda: a.e(f"s_add_u32 m0, s{S_DCUR}, s{S_W3}"))
        mt = put(40, 60, lambda: a.e(f"s_add_u32 s{S_T}, s{S_T}, 1"))
        put(max(dlast, mt) + 1, 71, lambda: (a.e(f"s_cmp_lt_u32 s{S_T}, {NT - D}"), a.e(f"s_cselect_b32 s{SRD_X + 2}, s{S_SIZE}, 0")), cost=8)
        sfirst = min(pos[f"s{i}"] for i in range(3))
        put(0, sfirst - 1, lambda: a.e(f"s_add_u32 s{S_OOFF}, s{S_OOFF}, {self.tstride}"))
        prev = -1
        for i in range(3):
            hi = pos[f"s{i}"] - o.rbdist
            prev = put(max(prev + 1, hi - 8, 0), max(hi, prev + 1), lambda i=i: self.readback(P, i), "rb")
        prev = o.cpos - 1
        for t in range(6):
            lo = max(prev + 1, o.cpos + o.cstep * t)
            prev = put(lo, 71, lambda t=t: self.cvt(1 - P, t, 0), "cvt")
            prev = put(prev + 1, 71, lambda t=t: self.cvt(1 - P, t, 1), "cvt")
            prev = put(prev + 1, 71, lambda t=t: self.swrite(1 - P, t, 1 - P), "sw", cost=o.swcost)
        last_use = {b: xpos[8 + b] for b in range(4)}
        first_upd = last_use[0] + 1
        m = put(8, first_upd - 6, lambda: a.e(f"s_add_u32 s{S_NXT}, s{S_CUR}, {TILEB}"))
        m = put(m + 1, first_upd - 4, lambda: (a.e(f"s_cmp_eq_u32 s{S_NXT}, {R * TILEB}"), a.e(f"s_cselect_b32 s{S_NXT}, 0, s{S_NXT}")), cost=8)
        m = put(m + 1, first_upd - 2, lambda: a.e(f"s_sub_u32 s{S_XD}, s{S_NXT}, s{S_CUR}"))
        m = put(m + 1, first_upd - 1, lambda: a.e(f"s_mov_b32 s{S_CUR}, s{S_NXT}"))
        for b in range(4):
            lo = max(last_use[b] + 1, m + 1)
            put(lo, 71, lambda b=b: a.e(f"v_add_u32 v{V_XA + b}, s{S_XD}, v{V_XA + b}"))

        for m in range(72):
            t, s = m // 12, m % 12
            self.mfma(P, s, t, P)
            for f in side[m]:
                f()

    def loop(self, D, NW):
        o, a = self.o, self.a
        nvar = 4 if o.lstag else 1
        for w in range(1, nvar):
            a.e(f"s_cmp_eq_u32 s{S_WAVE}, {w}")
            a.e(f"s_cbranch_scc1 L_loop{w}")
        for w in range(nvar):
            a.lines.append(".p2align 6")
            a.label(f"L_loop{w}")
            for P in range(2):
                a.vm = []
                if o.itst:
                    a.e("s_memrealtime s[74:75]")
                    a.e("s_memtime s[78:79]")
                a.e(f"s_waitcnt vmcnt({NW}) lgkmcnt(0)")
                a.lg = []
                if o.itst:
                    a.e("s_mov_b32 s76, m0")
                    a.e(f"s_mov_b32 m0, s{S_T}")
                    a.e("s_nop 0")
                    a.e(f"v_writelane_b32 v{V_T0}, s74, m0")
                    a.e(f"v_writelane_b32 v{V_T1}, s78, m0")
                    a.e("s_mov_b32 m0, s76")
                if "bar" not in o.skip:
                    a.e("s_barrier")
                self.iteration(P, D, w)
            a.e(f"s_cmp_lt_u32 s{S_T}, {NT}")
            a.e(f"s_cbranch_scc1 L_loop{w}")
            if w + 1 < nvar:
                a.e("s_branch L_drain")

    def drain(self):
        o, a = self.o, self.a
        a.label("L_drain")
        a.vm, a.lg = [], []
        a.e("s_waitcnt lgkmcnt(0)")
        a.e("s_barrier")
        a.e(f"s_add_u32 s{S_OOFF}, s{S_OOFF}, {self.tstride}")
        a.e("s_nop 4")
        for i in range(3):
            self.readback(0, i)
        for t in range(6):
            self.cvt(1, t, 0)
            self.cvt(1, t, 1)
            self.swrite(1, t, 1)
        for i in range(3):
            a.wait(lg=f"rb{i}")
            self.store(i, "s", f"s{S_OOFF}")
        a.e(f"s_add_u32 s{S_OOFF}, s{S_OOFF}, {self.tstride}")
        a.e("s_waitcnt lgkmcnt(0)")
        a.lg = []
        a.e("s_barrier")
        self.stamp(4)
        for i in range(3):
            a.e(f"ds_read_b128 {ar(A_XF + 4 * i, 4)}, v{V_SR + i} offset:{STGB}")
        for i in range(3):
            a.e(f"s_waitcnt lgkmcnt({0 if o.stamps else 2 - i})")
            a.e(f"buffer_store_dwordx4 {ar(A_XF + 4 * i, 4)}, v{V_ST}, s[{SRD_O}:{SRD_O + 3}], s{S_OOFF} offen offset:{1024 * i}{self.stf}")

    def build(self):
        o, a = self.o, self.a
        a.lines.append(f"""; 1x1 convolution as a GEMM: out[147456,384] = x[147456,384] @ w[384,384] + b, bf16.
; @launch grid=({NWG},1,1) block=(256,1,1) lds={self.lds}
.amdgcn_target "amdgcn-amd-amdhsa--gfx950"
.text
.globl {NAME}_kernel
.p2align 8
.type {NAME}_kernel,@function
{NAME}_kernel:""")
        a.e("s_load_dwordx8 s[4:11], s[0:1], 0")
        if o.stamps:
            a.e(f"s_load_dwordx2 s[{S_DBG}:{S_DBG + 1}], s[0:1], 40")
        self.stamp(0)
        if o.clk:
            a.e("s_memtime s[70:71]")
        a.e(f"s_cmp_ge_u32 s2, {NWG}")
        a.e("s_cbranch_scc1 L_done")
        a.e(f"v_lshrrev_b32 v{V_WV}, 6, v0")
        a.e(f"v_and_b32 v{V_LN}, 63, v0")
        a.e(f"v_readfirstlane_b32 s{S_WAVE}, v{V_WV}")
        a.e(f"v_and_b32 v{V_P}, 15, v0")
        a.e(f"v_bfe_u32 v{V_G}, v0, 4, 2")
        self.setup_x_dma()
        if o.contig:
            a.e(f"s_mul_i32 s{S_DOFF}, s2, {NT * TILEB}")
        elif o.xcontig:
            a.e(f"s_and_b32 s{S_TMP}, s2, 7")
            a.e(f"s_mul_i32 s{S_TMP}, s{S_TMP}, {32 * NT}")
            a.e(f"s_lshr_b32 s{S_DOFF}, s2, 3")
            a.e(f"s_add_u32 s{S_DOFF}, s{S_DOFF}, s{S_TMP}")
            a.e(f"s_mul_i32 s{S_DOFF}, s{S_DOFF}, {TILEB}")
        elif o.xblk:
            b = o.xblk
            a.e(f"s_lshr_b32 s{S_DOFF}, s2, 3")
            a.e(f"s_and_b32 s{S_TMP}, s2, 7")
            a.e(f"s_mul_i32 s{S_TMP}, s{S_TMP}, {b}")
            a.e(f"s_and_b32 s{S_NXT}, s{S_DOFF}, {b - 1}")
            a.e(f"s_add_u32 s{S_TMP}, s{S_TMP}, s{S_NXT}")
            a.e(f"s_lshr_b32 s{S_DOFF}, s{S_DOFF}, {b.bit_length() - 1}")
            a.e(f"s_mul_i32 s{S_DOFF}, s{S_DOFF}, {8 * b}")
            a.e(f"s_add_u32 s{S_DOFF}, s{S_DOFF}, s{S_TMP}")
            a.e(f"s_mul_i32 s{S_DOFF}, s{S_DOFF}, {TILEB}")
        elif o.xmaj:
            a.e(f"s_and_b32 s{S_TMP}, s2, 7")
            a.e(f"s_lshl_b32 s{S_TMP}, s{S_TMP}, 5")
            a.e(f"s_lshr_b32 s{S_DOFF}, s2, 3")
            a.e(f"s_add_u32 s{S_DOFF}, s{S_DOFF}, s{S_TMP}")
            a.e(f"s_mul_i32 s{S_DOFF}, s{S_DOFF}, {TILEB}")
        else:
            a.e(f"s_mul_i32 s{S_DOFF}, s2, {TILEB}")
        a.e(f"s_sub_u32 s{S_OOFF}, s{S_DOFF}, {self.tstride}")
        a.e(f"s_mul_i32 s{S_W3}, s{S_WAVE}, 3072")
        a.e(f"s_mul_i32 s{S_WM0}, s{S_WAVE}, 6144")
        a.e(f"s_mov_b32 s{S_DCUR}, 0")
        if o.wrot:
            a.e(f"s_lshr_b32 s{S_ROT}, s2, 3")
            a.e(f"s_mul_i32 s{S_TMP}, s{S_ROT}, {(65536 + o.wrot - 1) // o.wrot}")
            a.e(f"s_lshr_b32 s{S_TMP}, s{S_TMP}, 16")
            a.e(f"s_mul_i32 s{S_TMP}, s{S_TMP}, {o.wrot}")
            a.e(f"s_sub_u32 s{S_ROT}, s{S_ROT}, s{S_TMP}")
            a.e(f"s_mul_i32 s{S_ROT}, s{S_ROT}, {(12 // o.wrot) * WBUF}")
        for srd, size in ((SRD_X, 0 if o.nold else XBYTES), (SRD_W, 384 * 768), (SRD_O, 0)):
            a.e(f"s_mov_b32 s{srd + 2}, {size}")
            a.e(f"s_mov_b32 s{srd + 3}, 0x20000")
        self.setup_w_dma()
        a.e("s_waitcnt lgkmcnt(0)")
        for srd, ptr in ((SRD_X, P_X), (SRD_W, P_W), (SRD_O, P_O)):
            a.e(f"s_mov_b32 s{srd}, s{ptr}")
            a.e(f"s_and_b32 s{srd + 1}, s{ptr + 1}, 0xffff")
        D = o.D
        if len(o.groups) == 2:
            a.e(f"s_bitcmp1_b32 s2, {o.gbit}")
            a.e("s_cbranch_scc1 L_g1")
        for gi, (pre, xs) in enumerate(o.groups):
            NW = self.prologue(D, pre, xs, f"g{gi}")
            if gi + 1 < len(o.groups):
                a.e("s_branch L_enter")
        a.label("L_enter")
        self.loop(D, NW)
        self.drain()
        if o.stamps:
            self.stamp_out()
        a.label("L_done")
        a.e("s_endpgm")
        a.lines.append(f""".section .rodata,"a"
.p2align 6
.amdhsa_kernel {NAME}_kernel
  .amdhsa_next_free_vgpr 512
  .amdhsa_next_free_sgpr 96
  .amdhsa_accum_offset 256
  .amdhsa_group_segment_fixed_size 0
  .amdhsa_kernarg_size 48
  .amdhsa_user_sgpr_count 2
  .amdhsa_user_sgpr_kernarg_segment_ptr 1
  .amdhsa_system_sgpr_workgroup_id_x 1
.end_amdhsa_kernel""")
        return "\n".join(a.lines) + "\n"

    def stamp_out(self):
        o, a = self.o, self.a
        a.e("s_waitcnt vmcnt(0)")
        self.stamp(5)
        if o.clk:
            a.e("s_memtime s[72:73]")
        a.e("s_waitcnt lgkmcnt(0)")
        n = self.nstamp
        if o.clk:
            a.e("s_sub_u32 s72, s72, s70")
            a.e(f"s_mov_b32 s{S_ST + 2 * n}, s72")
            n += 1
        a.e(f"s_cmp_lg_u32 s{S_WAVE}, 0")
        a.e("s_cbranch_scc1 L_done")
        a.e(f"s_mov_b32 s{SRD_D}, s{S_DBG}")
        a.e(f"s_and_b32 s{SRD_D + 1}, s{S_DBG + 1}, 0xffff")
        a.e(f"s_mov_b32 s{SRD_D + 2}, {NWG * 64}")
        a.e(f"s_mov_b32 s{SRD_D + 3}, 0x20000")
        a.e(f"v_mov_b32 v{V_WV}, 0")
        a.e(f"s_lshl_b32 s{S_TMP}, s2, 6")
        for i in range(n):
            a.e(f"v_mov_b32 v{V_LN}, s{S_ST + 2 * i}")
            a.e(f"buffer_store_dword v{V_LN}, v{V_WV}, s[{SRD_D}:{SRD_D + 3}], s{S_TMP} offen offset:{4 * i}")
        if o.itst:
            a.e(f"s_mov_b32 s{SRD_D + 2}, {NWG * 64 + NWG * 512}")
            a.e(f"s_lshl_b32 s{S_NXT}, s2, 9")
            a.e(f"s_add_u32 s{S_NXT}, s{S_NXT}, {NWG * 64}")
            a.e(f"v_mbcnt_lo_u32_b32 v{V_TMP}, -1, 0")
            a.e(f"v_mbcnt_hi_u32_b32 v{V_TMP}, -1, v{V_TMP}")
            a.e(f"v_lshlrev_b32 v{V_TMP}, 2, v{V_TMP}")
            a.e(f"buffer_store_dword v{V_T0}, v{V_TMP}, s[{SRD_D}:{SRD_D + 3}], s{S_NXT} offen")
            a.e(f"buffer_store_dword v{V_T1}, v{V_TMP}, s[{SRD_D}:{SRD_D + 3}], s{S_NXT} offen offset:256")
        a.e(f"s_getreg_b32 s{S_T}, hwreg(HW_REG_XCC_ID)")
        a.e(f"v_mov_b32 v{V_LN}, s{S_T}")
        a.e(f"buffer_store_dword v{V_LN}, v{V_WV}, s[{SRD_D}:{SRD_D + 3}], s{S_TMP} offen offset:60")


FLAGS = ("xcontig", "xmaj", "nomfma", "zmfma", "contig", "stamps", "nost", "nold", "clk", "itst")


def ints(s):
    return [int(x) for x in s.split(",")]


def parse(argv):
    p = argparse.ArgumentParser()
    p.add_argument("-o", default="-")
    p.add_argument("--R", type=int, default=7)
    p.add_argument("--D", type=int, default=3)
    p.add_argument("--ld", default="nt")
    p.add_argument("--st", default="sc0 sc1")
    p.add_argument("--wf", default="")
    p.add_argument("--groups", default="2:0,0,0,0,0,0,0,1,0,0,0,0")
    p.add_argument("--gbit", type=int, default=3)
    p.add_argument("--xlate", type=int, default=8)
    p.add_argument("--wgap", type=int, default=2)
    p.add_argument("--nb", type=int, default=4)
    p.add_argument("--xblk", type=int, default=0)
    p.add_argument("--wrot", type=int, default=0)
    p.add_argument("--lorder", default="d0,d1,d2,s0,s1,s2")
    p.add_argument("--lbase", type=int, default=1)
    p.add_argument("--lstep", type=int, default=12)
    p.add_argument("--lstag", type=int, default=0)
    p.add_argument("--gapcap", type=int, default=4)
    p.add_argument("--rbdist", type=int, default=10)
    p.add_argument("--cpos", type=int, default=8)
    p.add_argument("--cstep", type=int, default=8)
    p.add_argument("--swcost", type=int, default=4)
    p.add_argument("--xstep", type=int, default=5)
    p.add_argument("--skip", default="")
    for f in FLAGS:
        p.add_argument("--" + f, action="store_true")
    o = p.parse_args(argv)
    gs = []
    for g in o.groups.split("/"):
        f = g.split(":")
        gs.append((int(f[0]), ints(f[1]) if len(f) > 1 else [0] * 12))
    o.groups = gs
    o.lorder = o.lorder.split(",")
    o.skip = set(o.skip.split(",")) if o.skip else set()
    return o


if __name__ == "__main__":
    o = parse(sys.argv[1:])
    text = Gen(o).build()
    if o.o == "-":
        sys.stdout.write(text)
    else:
        open(o.o, "w").write(text)
```

```python
import argparse
import sys

from gen2 import Asm, ar, vr

NAME = "standalone__standard_2d_1d_3d_conv__vision"
ROWB = 768
TILEB = 16 * ROWB
NWG = 256
NT = 36
XBYTES = 147456 * ROWB
STG_STRIDE = 784
STGB = 16 * STG_STRIDE
WBUF = 32 * ROWB

P_X, P_W, P_B, P_O = 4, 6, 8, 10
SRD_X, SRD_W, SRD_B, SRD_O = 12, 16, 20, 24
S_WAVE = 28
S_T = 29
S_DOFF = 30
S_OOFF = 31
S_WM0 = 32
S_XD = 33
S_CUR = 34
S_KOFF = 35
S_NXT = 38
S_ROT = 36
S_NT = 37
S_CLS4 = 81
S_NTD = 43
S_TMP = 39
S_SIZE = 40
S_W3 = 41
S_DCUR = 42
S_DBG = 44
S_ST = 46
SRD_D = 64
SRD_T = 84

V_XA = 0
V_DMA = 4
V_WD = 7
V_TRE, V_TRO = 10, 11
V_SW = 12
V_SR = 13
V_ST = 16
V_BO = 17
V_WV, V_LN, V_P, V_G = 18, 19, 20, 21
V_T0, V_T1 = 22, 23
BIAS = [24 + 4 * t for t in range(6)]
ACC = [[48 + 4 * t for t in range(6)], [72 + 4 * t for t in range(6)]]
V_W = 96
V_TMP = 240
V_TRE2, V_TRO2 = 252, 253
V_PF, V_PFA = 254, 255

A_W = 0
A_XF = 144
A_RB = 240


def wreg(s, t):
    return ("a", A_W + 24 * s + 4 * t) if s < 6 else ("v", V_W + 24 * (s - 6) + 4 * t)


def wfrag(s, t):
    k, b = wreg(s, t)
    return f"{k}[{b}:{b + 3}]"


def xf(s, buf):
    return A_XF + 48 * buf + 4 * s


class Gen:
    def __init__(self, o):
        self.o = o
        self.a = Asm()
        self.R = o.R
        self.WB = o.R * TILEB
        self.STG = self.WB
        self.lds = self.WB + 3 * WBUF
        assert self.lds <= 163840
        self.tstride = TILEB if o.contig else (32 * TILEB if o.xcontig else NWG * TILEB)
        if o.xblk:
            self.tstride = NWG * TILEB
        self.ldf = (" " + o.ld) if o.ld else ""
        self.stf = (" " + o.st) if o.st else ""
        self.wf = (" " + o.wf) if o.wf else ""
        self.nstamp = 0
        self.odd_counts = o.dn % 2 == 1 or (o.cnt and any(n % 2 for n in o.cnt))
        self.NTMAX = max(o.cnt) if o.cnt else NT + o.dn
        self.NB = o.nb
        self.LB = (o.R - 2) * TILEB
        self.wbase = [self.WB, self.WB + WBUF, self.WB + 2 * WBUF, self.LB]

    def wbuf(self, s):
        return self.wbase[s % self.NB]

    def stamp(self, i):
        if self.o.stamps:
            self.a.e(f"s_memrealtime s[{S_ST + 2 * i}:{S_ST + 2 * i + 1}]")
            self.nstamp = max(self.nstamp, i + 1)

    def dma(self, i, tag):
        self.a.vmop(f"buffer_load_dwordx4 v{V_DMA + i}, s[{SRD_X}:{SRD_X + 3}], s{S_DOFF} offen offset:{1024 * i}{self.ldf} lds", tag)

    def store(self, i, tag, soff, src=None):
        src = A_RB + 4 * i if src is None else src
        self.a.vmop(f"buffer_store_dwordx4 {ar(src, 4)}, v{V_ST}, s[{SRD_O}:{SRD_O + 3}], {soff} offen offset:{1024 * i}{self.stf}", tag)

    def prologue_tile(self, with_dummy):
        a = self.a
        t = self.ntile
        self.ntile += 1
        a.e(f"s_add_u32 m0, s{S_DCUR}, s{S_W3}")
        a.e(f"s_add_u32 s{S_DCUR}, s{S_DCUR}, {TILEB}")
        if with_dummy:
            for tag in self.iter_ops:
                if tag[0] == "d":
                    self.dma(int(tag[1]), f"x{t}")
                else:
                    self.store(int(tag[1]), "dummy", "0")
        else:
            for i in range(3):
                self.dma(i, f"x{t}")
        a.e(f"s_add_u32 s{S_DOFF}, s{S_DOFF}, {self.tstride}")

    def koff(self, s, h):
        a = self.a
        if not self.o.wrot:
            a.e(f"s_mov_b32 s{S_KOFF}, {s * WBUF + h * 16 * ROWB}")
            return
        a.e(f"s_add_u32 s{S_KOFF}, s{S_ROT}, {s * WBUF}")
        a.e(f"s_cmp_ge_u32 s{S_KOFF}, {12 * WBUF}")
        a.e(f"s_cselect_b32 s{S_TMP}, {12 * WBUF}, 0")
        a.e(f"s_sub_u32 s{S_KOFF}, s{S_KOFF}, s{S_TMP}")
        if h:
            a.e(f"s_add_u32 s{S_KOFF}, s{S_KOFF}, {16 * ROWB}")

    def w_dma(self, s):
        a = self.a
        for h in range(2):
            a.e(f"s_add_u32 m0, s{S_WM0}, {self.wbuf(s) + h * 3072}")
            self.koff(s, h)
            for i in range(3):
                a.vmop(f"buffer_load_dwordx4 v{V_WD + i}, s[{SRD_W}:{SRD_W + 3}], s{S_KOFF} offen offset:{1024 * i}{self.wf} lds", f"w{s}")

    def w_dma_ops(self, s):
        a = self.a
        ops = []
        for h in range(2):
            for i in range(3):
                def f(h=h, i=i):
                    if i == 0:
                        a.e(f"s_add_u32 m0, s{S_WM0}, {self.wbuf(s) + h * 3072}")
                        self.koff(s, h)
                    a.vmop(f"buffer_load_dwordx4 v{V_WD + i}, s[{SRD_W}:{SRD_W + 3}], s{S_KOFF} offen offset:{1024 * i}{self.wf} lds", f"w{s}")
                ops.append(f)
        return ops

    def w_tr(self, s, t, h2):
        if "tr" in self.o.skip:
            return
        k, b = wreg(s, t)
        rel = self.wbuf(s) - self.LB
        hi = rel >= 2 * WBUF
        base = (V_TRO2 if t & 1 else V_TRE2) if hi else (V_TRO if t & 1 else V_TRE)
        off = rel - (2 * WBUF if hi else 0) + 768 * h2 + 32 * t
        assert off < 65536
        self.a.lgop(f"ds_read_b64_tr_b16 {k}[{b + 2 * h2}:{b + 2 * h2 + 1}], v{base} offset:{off}", f"tr{s}")

    def xread(self, s, buf, tag):
        self.a.lgop(f"ds_read_b128 {ar(xf(s, buf), 4)}, v{V_XA + (s & 3)} offset:{(s >> 2) * 256}", tag)

    def xread_slot(self, s, buf, slot, tag):
        self.a.lgop(f"ds_read_b128 {ar(xf(s, buf), 4)}, v{V_XA + (s & 3)} offset:{slot * TILEB + (s >> 2) * 256}", tag)

    def cvt(self, P, t, h):
        r = ACC[P][t]
        self.a.e(f"v_cvt_pk_bf16_f32 v{r + h}, v{r + 2 * h}, v{r + 2 * h + 1}")

    def swrite(self, P, t, par):
        self.a.lgop(f"ds_write_b64 v{V_SW}, {vr(ACC[P][t], 2)} offset:{32 * t + par * STGB}", "sw")

    def readback(self, par, i, dst=None):
        dst = A_RB + 4 * i if dst is None else dst
        self.a.lgop(f"ds_read_b128 {ar(dst, 4)}, v{V_SR + i} offset:{par * STGB}", f"rb{i}")

    def mfma(self, P, s, t, buf):
        o = self.o
        if o.nomfma:
            return
        c = BIAS[t] if s == 0 else ACC[P][t]
        x = "a[252:255]" if o.zmfma else ar(xf(s, buf), 4)
        self.a.e(f"v_mfma_f32_16x16x32_bf16 {vr(ACC[P][t], 4)}, {wfrag(s, t)}, {x}, {vr(c, 4)}")

    def rr(self, i, dst):
        a = self.a
        if i == 0:
            a.e(f"v_add_u32 v{dst}, 16, v{V_LN}")
            a.e(f"v_lshrrev_b32 v{dst}, 6, v{dst}")
        elif i == 1:
            a.e(f"v_lshrrev_b32 v{dst}, 5, v{V_LN}")
            a.e(f"v_add_u32 v{dst}, 1, v{dst}")
        else:
            a.e(f"v_add_u32 v{dst}, 48, v{V_LN}")
            a.e(f"v_lshrrev_b32 v{dst}, 6, v{dst}")
            a.e(f"v_add_u32 v{dst}, 2, v{dst}")

    def setup_x_dma(self):
        a = self.a
        a.e(f"v_mul_u32_u24 v{V_T0}, 3072, v{V_WV}")
        for i in range(3):
            self.rr(i, V_T1)
            a.e(f"v_lshl_add_u32 v{V_T1}, v{V_WV}, 2, v{V_T1}")
            a.e(f"v_xor_b32 v{V_T1}, v{V_T1}, v{V_LN}")
            a.e(f"v_lshl_add_u32 v{V_DMA + i}, v{V_T1}, 4, v{V_T0}")

    def setup_w_dma(self):
        a = self.a
        t0, t1, t2 = V_TMP, V_TMP + 1, V_TMP + 2
        a.e(f"v_mul_u32_u24 v{V_T0}, 192, v{V_WV}")
        for i in range(3):
            a.e(f"v_add_u32 v{t0}, {64 * i}, v{V_LN}")
            a.e(f"v_mul_u32_u24 v{t1}, 171, v{t0}")
            a.e(f"v_lshrrev_b32 v{t1}, 11, v{t1}")
            a.e(f"v_mul_u32_u24 v{t2}, 12, v{t1}")
            a.e(f"v_sub_u32 v{t0}, v{t0}, v{t2}")
            a.e(f"v_bfe_u32 v{t2}, v{t1}, 3, 1")
            a.e(f"v_lshlrev_b32 v{t2}, 1, v{t2}")
            a.e(f"v_xor_b32 v{t0}, v{t0}, v{t2}")
            a.e(f"v_lshl_add_u32 v{t0}, v{t0}, 4, v{V_T0}")
            a.e(f"v_mul_u32_u24 v{t1}, {ROWB}, v{t1}")
            a.e(f"v_add_u32 v{t0}, v{t0}, v{t1}")
            a.e(f"v_subrev_u32 v{V_WD + i}, {1024 * i}, v{t0}")

    def setup_mid(self):
        o, a = self.o, self.a
        a.e(f"s_mul_i32 s{S_WM0}, s{S_WAVE}, 6144")
        if o.cnt:
            assert o.xcontig and sum(o.cnt) == 8 * NT and all(32 <= n < 48 for n in o.cnt)
            packed = sum((n - 32) << (4 * c) for c, n in enumerate(o.cnt))
            a.e(f"s_lshr_b32 s{S_NT}, {packed}, s{S_CLS4}")
            a.e(f"s_and_b32 s{S_NT}, s{S_NT}, 15")
            a.e(f"s_add_u32 s{S_NT}, s{S_NT}, 32")
        elif o.dn:
            assert o.xcontig
            a.e(f"s_bitcmp1_b32 s2, 0")
            a.e(f"s_mov_b32 s{S_NT}, {NT + o.dn}")
            a.e(f"s_cselect_b32 s{S_NT}, {NT - o.dn}, s{S_NT}")
        else:
            a.e(f"s_mov_b32 s{S_NT}, {NT}")
        a.e(f"s_sub_u32 s{S_NTD}, s{S_NT}, {o.D}")
        if o.wrot:
            a.e(f"s_lshr_b32 s{S_ROT}, s2, 3")
            a.e(f"s_mul_i32 s{S_TMP}, s{S_ROT}, {(65536 + o.wrot - 1) // o.wrot}")
            a.e(f"s_lshr_b32 s{S_TMP}, s{S_TMP}, 16")
            a.e(f"s_mul_i32 s{S_TMP}, s{S_TMP}, {o.wrot}")
            a.e(f"s_sub_u32 s{S_ROT}, s{S_ROT}, s{S_TMP}")
            a.e(f"s_mul_i32 s{S_ROT}, s{S_ROT}, {(12 // o.wrot) * WBUF}")
        self.setup_w_dma()

    def setup_out_srd(self):
        a = self.a
        a.e(f"s_mov_b32 s{SRD_O}, s{P_O}")
        a.e(f"s_and_b32 s{SRD_O + 1}, s{P_O + 1}, 0xffff")
        a.e(f"s_mov_b32 s{SRD_O + 2}, 0")
        a.e(f"s_mov_b32 s{SRD_O + 3}, 0x20000")

    def setup_rest(self):
        a = self.a
        t0, t1 = V_T0, V_T1
        a.e(f"v_mul_u32_u24 v{t0}, 192, v{V_WV}")
        a.e(f"v_lshl_add_u32 v{V_BO}, v{V_G}, 3, v{t0}")
        a.e(f"s_mov_b32 s{SRD_B}, s{P_B}")
        a.e(f"s_and_b32 s{SRD_B + 1}, s{P_B + 1}, 0xffff")
        a.e(f"s_mov_b32 s{SRD_B + 2}, 768")
        a.e(f"s_mov_b32 s{SRD_B + 3}, 0x20000")
        for t in range(6):
            a.vmop(f"buffer_load_dwordx2 {ar(A_RB + 2 * t, 2)}, v{V_BO}, s[{SRD_B}:{SRD_B + 3}], 0 offen offset:{32 * t}", "bias")
        a.e(f"v_mul_u32_u24 v{t0}, {ROWB}, v{V_P}")
        for b in range(4):
            a.e(f"v_add_u32 v{t1}, {4 * b}, v{V_G}")
            a.e(f"v_xor_b32 v{t1}, v{t1}, v{V_P}")
            a.e(f"v_lshl_add_u32 v{V_XA + b}, v{t1}, 4, v{t0}")
        a.e(f"v_lshrrev_b32 v{t0}, 2, v{V_P}")
        a.e(f"v_lshl_add_u32 v{t0}, v{V_G}, 3, v{t0}")
        a.e(f"v_mul_u32_u24 v{t0}, 192, v{t0}")
        a.e(f"v_and_b32 v{t1}, 3, v{V_P}")
        a.e(f"v_lshl_add_u32 v{t0}, v{t1}, 3, v{t0}")
        a.e(f"v_mul_u32_u24 v{t1}, 6144, v{V_WV}")
        a.e(f"v_add_u32 v{t0}, v{t0}, v{t1}")
        a.e(f"v_add_u32 v{t0}, {self.LB}, v{t0}")
        a.e(f"v_and_b32 v{t1}, 1, v{V_G}")
        a.e(f"v_lshlrev_b32 v{t1}, 5, v{t1}")
        a.e(f"v_add_u32 v{V_TRE}, v{t0}, v{t1}")
        a.e(f"v_sub_u32 v{V_TRO}, v{t0}, v{t1}")
        a.e(f"v_add_u32 v{V_TRE2}, {2 * WBUF}, v{V_TRE}")
        a.e(f"v_add_u32 v{V_TRO2}, {2 * WBUF}, v{V_TRO}")
        a.e(f"v_mul_u32_u24 v{V_SW}, {STG_STRIDE}, v{V_P}")
        a.e(f"v_add_u32 v{V_SW}, v{V_SW}, v{V_BO}")
        a.e(f"v_add_u32 v{V_SW}, {self.STG}, v{V_SW}")
        a.e(f"v_mul_u32_u24 v{V_ST}, 3072, v{V_WV}")
        a.e(f"v_lshl_add_u32 v{V_ST}, v{V_LN}, 4, v{V_ST}")
        a.e(f"v_mul_u32_u24 v{t0}, {4 * STG_STRIDE}, v{V_WV}")
        a.e(f"v_add_u32 v{t0}, {self.STG}, v{t0}")
        for i in range(3):
            self.rr(i, t1)
            a.e(f"v_add_u32 v{t1}, v{t1}, v{V_LN}")
            a.e(f"v_lshl_add_u32 v{t1}, v{t1}, 4, v{t0}")
            a.e(f"v_add_u32 v{V_SR + i}, {1024 * i}, v{t1}")
        a.e(f"s_mov_b32 s{S_SIZE}, {0 if self.o.nold else XBYTES}")

    def bias_convert(self):
        a = self.a
        for d in range(12):
            a.e(f"v_accvgpr_read_b32 v{V_TMP + d}, a{A_RB + d}")
        for t in range(6):
            for h in range(2):
                a.e(f"v_lshlrev_b32 v{BIAS[t] + 2 * h}, 16, v{V_TMP + 2 * t + h}")
                a.e(f"v_and_b32 v{BIAS[t] + 2 * h + 1}, 0xffff0000, v{V_TMP + 2 * t + h}")

    def prologue(self, D, pre, xs, gname):
        o, a, R = self.o, self.a, self.R
        a.label(f"L_{gname}")
        self.iter_ops = self.iter_order()
        a.vm, a.lg = [], []
        self.ntile = 0
        npro = D + 2
        assert npro <= R
        assert 2 <= pre <= min(npro, R - 2)
        if o.wpre:
            a.vmop(f"buffer_load_dword v{V_PF}, v{V_PFA}, s[{SRD_W}:{SRD_W + 3}], 0 offen{self.wf}", "pf")
        for _ in range(pre):
            self.prologue_tile(False)
        if o.early:
            self.setup_mid()
            self.setup_out_srd()
        if o.tlbpf:
            a.e(f"s_mov_b32 s{SRD_T}, s{P_O}")
            a.e(f"s_and_b32 s{SRD_T + 1}, s{P_O + 1}, 0xffff")
            a.e(f"s_mov_b32 s{SRD_T + 2}, {XBYTES}")
            a.e(f"s_mov_b32 s{SRD_T + 3}, 0x20000")
            a.e(f"v_lshlrev_b32 v{V_PFA}, 21, v{V_LN}")
            a.e(f"v_mov_b32 v{V_T0}, 0x7ffffff0")
            a.e(f"v_cmp_gt_u32 vcc, {o.tlbpf}, v{V_LN}")
            a.e(f"s_add_u32 s{S_TMP}, s{S_OOFF}, {self.tstride}")
            a.e("s_nop 0")
            a.e(f"v_cndmask_b32 v{V_PFA}, v{V_T0}, v{V_PFA}, vcc")
            a.vmop(f"buffer_load_dword v{V_PF}, v{V_PFA}, s[{SRD_T}:{SRD_T + 3}], s{S_TMP} offen nt", "pf")
            a.vmop(f"buffer_load_dword v{V_PF}, v{V_PFA}, s[{SRD_X}:{SRD_X + 3}], s{S_TMP} offen nt", "pf")
        self.w_dma(0)
        self.setup_rest()

        def after_w(s, last_ok=True):
            for _ in range(xs[s]):
                if self.ntile < npro:
                    self.prologue_tile(s == 11)

        after_w(0)
        NB = self.NB
        for s in range(1, NB):
            self.w_dma(s)
            after_w(s)
        self.stamp(1)
        a.wait(vm="x1")
        a.e("s_barrier")
        self.xread_slot(0, 0, 0, "xf")
        self.xread_slot(0, 1, 1, "xf")
        a.wait(vm="w0")
        self.stamp(2)
        if o.stamps:
            a.e("s_waitcnt lgkmcnt(0)")
            a.lg = []
        for t in range(6):
            for h2 in range(2):
                self.w_tr(0, t, h2)
        a.wait(vm="bias")
        self.bias_convert()
        if o.zmfma:
            for i in range(4):
                a.e(f"v_accvgpr_write_b32 a{252 + i}, 0")
        a.wait(lg="all")
        for s in range(12):
            lds, vmem = [], []
            if s + 1 < 12:
                a.wait(vm=f"w{s + 1}")
                lds.append(lambda s=s: self.xread_slot(s + 1, 0, 0, "xf"))
                lds.append(lambda s=s: self.xread_slot(s + 1, 1, 1, "xf"))
                for t in range(6):
                    for h2 in range(2):
                        lds.append(lambda s=s, t=t, h2=h2: self.w_tr(s + 1, t, h2))
            else:
                while self.ntile < 3:
                    self.prologue_tile(True)
                a.wait(vm="x2")
                a.e("s_barrier")
                for k in range(12):
                    lds.append(lambda k=k: self.xread_slot(k, 0, 2, "xf"))
            early = min(npro, R - 2) if NB == 4 else npro
            if s + NB < 12:
                vmem += self.w_dma_ops(s + NB)
                for _ in range(xs[s + NB]):
                    if self.ntile + sum(1 for f in vmem if getattr(f, "tile", False)) < early:
                        f = lambda s=s: self.prologue_tile(s + NB == 11)
                        f.tile = True
                        vmem.append(f)
            elif s >= o.xlate and s < 11 and self.ntile < early:
                vmem.append(lambda: self.prologue_tile(True))
            slot = 0
            for n in range(2):
                for t in range(6):
                    self.mfma(n, s, t, n)
                    if o.dupm:
                        a.e(f"v_mfma_f32_16x16x32_bf16 v[244:247], {wfrag(s, t)}, {ar(xf(s, n), 4)}, v[244:247]")
                    if s == 11:
                        lds.pop(0)()
                    else:
                        for _ in range(2):
                            if lds:
                                lds.pop(0)()
                        if vmem and slot % o.wgap == 0:
                            vmem.pop(0)()
                    slot += 1
            while lds:
                lds.pop(0)()
            while vmem:
                vmem.pop(0)()
            if o.itst:
                a.e("s_memrealtime s[74:75]")
                a.e("s_memtime s[78:79]")
                a.e("s_waitcnt lgkmcnt(0)")
                a.lg = [] if s < 11 else a.lg
                a.e("s_mov_b32 s76, m0")
                a.e(f"s_mov_b32 m0, {40 + s}")
                a.e("s_nop 0")
                a.e(f"v_writelane_b32 v{V_T0}, s74, m0")
                a.e(f"v_writelane_b32 v{V_T1}, s78, m0")
                a.e("s_mov_b32 m0, s76")
            if s < 11:
                a.wait(lg="all")
        while self.ntile < npro:
            self.prologue_tile(True)
        a.wait(lg="xf")
        a.e("s_nop 1")
        for t in range(6):
            self.cvt(0, t, 0)
            self.cvt(0, t, 1)
            self.swrite(0, t, 0)
        for b in range(4):
            a.e(f"v_add_u32 v{V_XA + b}, {3 * TILEB}, v{V_XA + b}")
        a.e(f"s_mov_b32 s{S_CUR}, {3 * TILEB}")
        a.e(f"s_mov_b32 s{S_T}, 2")
        if npro == R:
            a.e(f"s_mov_b32 s{S_DCUR}, 0")
        a.e(f"s_add_u32 m0, s{S_DCUR}, s{S_W3}")
        if not o.nost:
            a.e(f"s_mov_b32 s{SRD_O + 2}, {XBYTES}")
        self.stamp(3)
        pro_queue = list(a.vm)
        ops = self.iter_ops
        last_d = max(i for i, t in enumerate(ops) if t[0] == "d")
        NW = (len(ops) - 1 - last_d) + len(ops) * (D - 2)
        assert NW + len(ops) <= 63
        q = list(pro_queue)
        for t in range(2, self.NTMAX):
            q = q[len(q) - NW:] if len(q) > NW else q
            assert f"x{t + 1}" not in q, f"iteration {t}: tile not covered"
            q += [f"x{t + D}" if x[0] == "d" else "st" for x in ops]
            assert len(q) <= 63
        return NW

    def long_positions(self, w):
        o = self.o
        if o.lpos:
            return {name: m + o.lstag * w for name, m in zip(o.lorder, o.lpos)}
        return {name: o.lbase + o.lstep * k + o.lstag * w for k, name in enumerate(o.lorder)}

    def iter_order(self):
        orders = []
        for w in range(4):
            pos = self.long_positions(w)
            ev = [(pos[f"d{i}"], 0, f"d{i}") for i in range(3)] + [(pos[f"s{i}"], 1, f"s{i}") for i in range(3)]
            orders.append([t for _, _, t in sorted(ev)])
        assert all(x == orders[0] for x in orders)
        return orders[0]

    def iteration(self, P, D, w):
        o, a, R = self.o, self.a, self.R
        side = {m: [] for m in range(72)}
        load = {m: 0 for m in range(72)}
        pos = self.long_positions(w)
        for name, m in pos.items():
            assert 0 <= m < 72, (name, m)
            load[m] += 8
        load[71] += 4

        def at(m, f, kind=None):
            if kind is None or kind not in o.skip:
                side[m].append(f)

        def put(lo, hi, f, kind=None, cost=4):
            hi = min(hi, 71)
            assert lo <= hi, (lo, hi)
            best = min(range(lo, hi + 1), key=lambda m: (load[m] + cost > o.gapcap, load[m] if load[m] + cost > o.gapcap else 0, m))
            load[best] += cost
            at(best, f, kind)
            return best

        for i in range(3):
            at(pos[f"d{i}"], lambda i=i: self.dma(i, "d"), "dma")

            def st(i=i):
                a.wait(lg=f"rb{i}")
                self.store(i, "s", f"s{S_OOFF}")
            at(pos[f"s{i}"], st, "st")
        xpos = {}
        for s in range(12):
            lo = o.xstep * s
            xpos[s] = put(lo, lo + 4, lambda s=s: self.xread(s, 1 - P, f"xf{s}"), "xr")
        dlast = max(pos[f"d{i}"] for i in range(3))
        m = put(dlast + 1, 71, lambda: a.e(f"s_add_u32 s{S_DOFF}, s{S_DOFF}, {self.tstride}"))
        m = put(dlast + 1, 71, lambda: a.e(f"s_add_u32 s{S_DCUR}, s{S_DCUR}, {TILEB}"))
        m = put(m + 1, 71, lambda: (a.e(f"s_cmp_eq_u32 s{S_DCUR}, {R * TILEB}"), a.e(f"s_cselect_b32 s{S_DCUR}, 0, s{S_DCUR}")), cost=8)
        m = put(m + 1, 71, lambda: a.e(f"s_add_u32 m0, s{S_DCUR}, s{S_W3}"))
        mt = put(40, 60, lambda: a.e(f"s_add_u32 s{S_T}, s{S_T}, 1"))
        put(max(dlast, mt) + 1, 71, lambda: (a.e(f"s_cmp_lt_u32 s{S_T}, s{S_NTD}"), a.e(f"s_cselect_b32 s{SRD_X + 2}, s{S_SIZE}, 0")), cost=8)
        sfirst = min(pos[f"s{i}"] for i in range(3))
        put(0, sfirst - 1, lambda: a.e(f"s_add_u32 s{S_OOFF}, s{S_OOFF}, {self.tstride}"))
        prev = -1
        for i in range(3):
            hi = pos[f"s{i}"] - o.rbdist
            prev = put(max(prev + 1, hi - 8, 0), max(hi, prev + 1), lambda i=i: self.readback(P, i), "rb")
        prev = o.cpos - 1
        for t in range(6):
            lo = max(prev + 1, o.cpos + o.cstep * t)
            prev = put(lo, 71, lambda t=t: self.cvt(1 - P, t, 0), "cvt")
            prev = put(prev + 1, 71, lambda t=t: self.cvt(1 - P, t, 1), "cvt")
            prev = put(prev + 1, 71, lambda t=t: self.swrite(1 - P, t, 1 - P), "sw", cost=o.swcost)
        last_use = {b: xpos[8 + b] for b in range(4)}
        first_upd = last_use[0] + 1
        m = put(8, first_upd - 6, lambda: a.e(f"s_add_u32 s{S_NXT}, s{S_CUR}, {TILEB}"))
        m = put(m + 1, first_upd - 4, lambda: (a.e(f"s_cmp_eq_u32 s{S_NXT}, {R * TILEB}"), a.e(f"s_cselect_b32 s{S_NXT}, 0, s{S_NXT}")), cost=8)
        m = put(m + 1, first_upd - 2, lambda: a.e(f"s_sub_u32 s{S_XD}, s{S_NXT}, s{S_CUR}"))
        m = put(m + 1, first_upd - 1, lambda: a.e(f"s_mov_b32 s{S_CUR}, s{S_NXT}"))
        for b in range(4):
            lo = max(last_use[b] + 1, m + 1)
            put(lo, 71, lambda b=b: a.e(f"v_add_u32 v{V_XA + b}, s{S_XD}, v{V_XA + b}"))

        for m in range(72):
            t, s = m // 12, m % 12
            self.mfma(P, s, t, P)
            for f in side[m]:
                f()

    def loop(self, D, NW):
        o, a = self.o, self.a
        nvar = 4 if o.lstag else 1
        for w in range(1, nvar):
            a.e(f"s_cmp_eq_u32 s{S_WAVE}, {w}")
            a.e(f"s_cbranch_scc1 L_loop{w}")
        phases = [(o.st, None)] if o.ksw is None else [(o.st1, o.ksw), (o.st, None)]
        for w in range(nvar):
            for ph, (flags, tend) in enumerate(phases):
                self.stf = (" " + flags) if flags else ""
                name = f"L_loop{w}" + ("a" if tend is not None else ("b" if len(phases) > 1 else ""))
                a.lines.append(".p2align 6")
                if ph == 0 and len(phases) > 1:
                    a.label(f"L_loop{w}")
                a.label(name) if name != f"L_loop{w}" or len(phases) > 1 else a.label(name)
                for P in range(2):
                    a.vm = []
                    if o.itst:
                        a.e("s_memrealtime s[74:75]")
                        a.e("s_memtime s[78:79]")
                    a.e(f"s_waitcnt vmcnt({NW}) lgkmcnt(0)")
                    a.lg = []
                    if o.itst:
                        a.e("s_mov_b32 s76, m0")
                        a.e(f"s_mov_b32 m0, s{S_T}")
                        a.e("s_nop 0")
                        a.e(f"v_writelane_b32 v{V_T0}, s74, m0")
                        a.e(f"v_writelane_b32 v{V_T1}, s78, m0")
                        a.e("s_mov_b32 m0, s76")
                    if "bar" not in o.skip:
                        a.e("s_barrier")
                    self.iteration(P, D, w)
                    if P == 0 and self.odd_counts and tend is None:
                        a.e(f"s_cmp_ge_u32 s{S_T}, s{S_NT}")
                        a.e("s_cbranch_scc1 L_drain0")
                if tend is not None:
                    a.e(f"s_cmp_lt_u32 s{S_T}, {tend}")
                else:
                    a.e(f"s_cmp_lt_u32 s{S_T}, s{S_NT}")
                a.e(f"s_cbranch_scc1 {name}")
            if w + 1 < nvar:
                a.e("s_branch L_drain1")

    def drain(self, P, last):
        o, a = self.o, self.a
        a.label(f"L_drain{P}")
        a.vm, a.lg = [], []
        a.e("s_waitcnt lgkmcnt(0)")
        a.e("s_barrier")
        a.e(f"s_add_u32 s{S_OOFF}, s{S_OOFF}, {self.tstride}")
        a.e("s_nop 4")
        for i in range(3):
            self.readback(1 - P, i)
        for t in range(6):
            self.cvt(P, t, 0)
            self.cvt(P, t, 1)
            self.swrite(P, t, P)
        for i in range(3):
            a.wait(lg=f"rb{i}")
            self.store(i, "s", f"s{S_OOFF}")
        a.e(f"s_add_u32 s{S_OOFF}, s{S_OOFF}, {self.tstride}")
        a.e("s_waitcnt lgkmcnt(0)")
        a.lg = []
        a.e("s_barrier")
        self.stamp(4)
        for i in range(3):
            a.e(f"ds_read_b128 {ar(A_XF + 4 * i, 4)}, v{V_SR + i} offset:{P * STGB}")
        for i in range(3):
            a.e(f"s_waitcnt lgkmcnt({0 if o.stamps else 2 - i})")
            a.e(f"buffer_store_dwordx4 {ar(A_XF + 4 * i, 4)}, v{V_ST}, s[{SRD_O}:{SRD_O + 3}], s{S_OOFF} offen offset:{1024 * i}{self.stf}")
        if not last:
            a.e("s_branch L_end")

    def build(self):
        o, a = self.o, self.a
        a.lines.append(f"""; 1x1 convolution as a GEMM: out[147456,384] = x[147456,384] @ w[384,384] + b, bf16.
; @launch grid=({NWG},1,1) block=(256,1,1) lds={self.lds}
.amdgcn_target "amdgcn-amd-amdhsa--gfx950"
.text
.globl {NAME}_kernel
.p2align 8
.type {NAME}_kernel,@function
{NAME}_kernel:""")
        a.e("s_load_dwordx8 s[4:11], s[0:1], 0")
        if o.stamps:
            a.e(f"s_load_dwordx2 s[{S_DBG}:{S_DBG + 1}], s[0:1], {32 if o.dbg else 40}")
        self.stamp(0)
        if o.clk:
            a.e("s_memtime s[70:71]")
        a.e(f"s_cmp_ge_u32 s2, {NWG}")
        a.e("s_cbranch_scc1 L_done")
        a.e(f"v_lshrrev_b32 v{V_WV}, 6, v0")
        a.e(f"v_and_b32 v{V_LN}, 63, v0")
        a.e(f"v_readfirstlane_b32 s{S_WAVE}, v{V_WV}")
        if o.wpre:
            a.e(f"s_lshr_b32 s{S_TMP}, s2, 3")
            a.e(f"s_and_b32 s{S_TMP}, s{S_TMP}, 31")
            a.e(f"s_lshl_b32 s{S_TMP}, s{S_TMP}, 8")
            a.e(f"v_add_u32 v{V_PFA}, s{S_TMP}, v0")
            a.e(f"v_mul_u32_u24 v{V_PFA}, 36, v{V_PFA}")
        a.e(f"v_and_b32 v{V_P}, 15, v0")
        a.e(f"v_bfe_u32 v{V_G}, v0, 4, 2")
        self.setup_x_dma()
        if o.contig:
            a.e(f"s_mul_i32 s{S_DOFF}, s2, {NT * TILEB}")
        elif o.xcontig:
            a.e(f"s_and_b32 s{S_TMP}, s2, 7")
            if o.cnt:
                pre = [sum(o.cnt[:c]) - NT * c for c in range(8)]
                assert all(-8 <= d < 8 for d in pre)
                packed = sum((d + 8) << (4 * c) for c, d in enumerate(pre))
                a.e(f"s_lshl_b32 s{S_CLS4}, s{S_TMP}, 2")
                a.e(f"s_lshr_b32 s{S_NXT}, {packed}, s{S_CLS4}")
                a.e(f"s_and_b32 s{S_NXT}, s{S_NXT}, 15")
                a.e(f"s_mul_i32 s{S_TMP}, s{S_TMP}, {NT}")
                a.e(f"s_add_u32 s{S_TMP}, s{S_TMP}, s{S_NXT}")
                a.e(f"s_sub_u32 s{S_TMP}, s{S_TMP}, 8")
                a.e(f"s_lshl_b32 s{S_TMP}, s{S_TMP}, 5")
            else:
                a.e(f"s_mul_i32 s{S_TMP}, s{S_TMP}, {32 * NT}")
            if o.dn:
                a.e(f"s_bitcmp1_b32 s2, 0")
                a.e(f"s_cselect_b32 s{S_NXT}, {32 * o.dn}, 0")
                a.e(f"s_add_u32 s{S_TMP}, s{S_TMP}, s{S_NXT}")
            a.e(f"s_lshr_b32 s{S_DOFF}, s2, 3")
            a.e(f"s_add_u32 s{S_DOFF}, s{S_DOFF}, s{S_TMP}")
            a.e(f"s_mul_i32 s{S_DOFF}, s{S_DOFF}, {TILEB}")
        elif o.xmaj:
            a.e(f"s_and_b32 s{S_TMP}, s2, 7")
            a.e(f"s_lshl_b32 s{S_TMP}, s{S_TMP}, 5")
            a.e(f"s_lshr_b32 s{S_DOFF}, s2, 3")
            a.e(f"s_add_u32 s{S_DOFF}, s{S_DOFF}, s{S_TMP}")
            a.e(f"s_mul_i32 s{S_DOFF}, s{S_DOFF}, {TILEB}")
        else:
            a.e(f"s_mul_i32 s{S_DOFF}, s2, {TILEB}")
        a.e(f"s_sub_u32 s{S_OOFF}, s{S_DOFF}, {self.tstride}")
        a.e(f"s_mul_i32 s{S_W3}, s{S_WAVE}, 3072")
        a.e(f"s_mov_b32 s{S_DCUR}, 0")
        for srd, size in ((SRD_X, 0 if o.nold else XBYTES), (SRD_W, 384 * 768)):
            a.e(f"s_mov_b32 s{srd + 2}, {size}")
            a.e(f"s_mov_b32 s{srd + 3}, 0x20000")
        if not o.early:
            self.setup_mid()
        a.e("s_waitcnt lgkmcnt(0)")
        for srd, ptr in ((SRD_X, P_X), (SRD_W, P_W)):
            a.e(f"s_mov_b32 s{srd}, s{ptr}")
            a.e(f"s_and_b32 s{srd + 1}, s{ptr + 1}, 0xffff")
        if not o.early:
            self.setup_out_srd()
        D = o.D
        if len(o.groups) == 2:
            a.e(f"s_bitcmp1_b32 s2, {o.gbit}")
            a.e("s_cbranch_scc1 L_g1")
        for gi, (pre, xs) in enumerate(o.groups):
            NW = self.prologue(D, pre, xs, f"g{gi}")
            if gi + 1 < len(o.groups):
                a.e("s_branch L_enter")
        a.label("L_enter")
        self.loop(D, NW)
        if self.odd_counts:
            self.drain(1, False)
            self.drain(0, True)
        else:
            self.drain(1, True)
        a.label("L_end")
        if o.stamps:
            self.stamp_out()
        a.label("L_done")
        a.e("s_endpgm")
        a.lines.append(f""".section .rodata,"a"
.p2align 6
.amdhsa_kernel {NAME}_kernel
  .amdhsa_next_free_vgpr 512
  .amdhsa_next_free_sgpr 96
  .amdhsa_accum_offset 256
  .amdhsa_group_segment_fixed_size 0
  .amdhsa_kernarg_size 48
  .amdhsa_user_sgpr_count 2
  .amdhsa_user_sgpr_kernarg_segment_ptr 1
  .amdhsa_system_sgpr_workgroup_id_x 1
.end_amdhsa_kernel""")
        return "\n".join(a.lines) + "\n"

    def stamp_out(self):
        o, a = self.o, self.a
        a.e("s_waitcnt vmcnt(0)")
        self.stamp(5)
        if o.clk:
            a.e("s_memtime s[72:73]")
        a.e("s_waitcnt lgkmcnt(0)")
        n = self.nstamp
        if o.clk:
            a.e("s_sub_u32 s72, s72, s70")
            a.e(f"s_mov_b32 s{S_ST + 2 * n}, s72")
            n += 1
        a.e(f"s_cmp_lg_u32 s{S_WAVE}, 0")
        a.e("s_cbranch_scc1 L_done")
        a.e(f"s_mov_b32 s{SRD_D}, s{S_DBG}")
        a.e(f"s_and_b32 s{SRD_D + 1}, s{S_DBG + 1}, 0xffff")
        a.e(f"s_mov_b32 s{SRD_D + 2}, {256 if o.dbg else NWG * 64}")
        a.e(f"s_mov_b32 s{SRD_D + 3}, 0x20000")
        a.e(f"v_mov_b32 v{V_WV}, 0")
        if o.dbg:
            a.e("s_mov_b64 exec, 1")
            for i in range(1, n):
                a.e(f"s_sub_u32 s{S_TMP}, s{S_ST + 2 * i}, s{S_ST}")
                a.e(f"v_mov_b32 v{V_LN}, s{S_TMP}")
                a.e(f"v_not_b32 v{V_P}, v{V_LN}")
                a.e(f"buffer_atomic_umax v{V_LN}, v{V_WV}, s[{SRD_D}:{SRD_D + 3}], 0 offen offset:{8 * i + 4}")
                a.e(f"buffer_atomic_umax v{V_P}, v{V_WV}, s[{SRD_D}:{SRD_D + 3}], 0 offen offset:{8 * i}")
            a.e(f"v_mov_b32 v{V_LN}, s{S_ST}")
            a.e(f"v_not_b32 v{V_P}, v{V_LN}")
            a.e(f"buffer_atomic_umax v{V_LN}, v{V_WV}, s[{SRD_D}:{SRD_D + 3}], 0 offen offset:4")
            a.e(f"buffer_atomic_umax v{V_P}, v{V_WV}, s[{SRD_D}:{SRD_D + 3}], 0 offen offset:0")
            a.e("s_endpgm")
        a.e(f"s_lshl_b32 s{S_TMP}, s2, 6")
        for i in range(n):
            a.e(f"v_mov_b32 v{V_LN}, s{S_ST + 2 * i}")
            a.e(f"buffer_store_dword v{V_LN}, v{V_WV}, s[{SRD_D}:{SRD_D + 3}], s{S_TMP} offen offset:{4 * i}")
        if o.itst:
            a.e(f"s_mov_b32 s{SRD_D + 2}, {NWG * 64 + NWG * 512}")
            a.e(f"s_lshl_b32 s{S_NXT}, s2, 9")
            a.e(f"s_add_u32 s{S_NXT}, s{S_NXT}, {NWG * 64}")
            a.e(f"v_mbcnt_lo_u32_b32 v{V_TMP}, -1, 0")
            a.e(f"v_mbcnt_hi_u32_b32 v{V_TMP}, -1, v{V_TMP}")
            a.e(f"v_lshlrev_b32 v{V_TMP}, 2, v{V_TMP}")
            a.e(f"buffer_store_dword v{V_T0}, v{V_TMP}, s[{SRD_D}:{SRD_D + 3}], s{S_NXT} offen")
            a.e(f"buffer_store_dword v{V_T1}, v{V_TMP}, s[{SRD_D}:{SRD_D + 3}], s{S_NXT} offen offset:256")
        a.e(f"s_getreg_b32 s{S_T}, hwreg(HW_REG_XCC_ID)")
        a.e(f"v_mov_b32 v{V_LN}, s{S_T}")
        a.e(f"buffer_store_dword v{V_LN}, v{V_WV}, s[{SRD_D}:{SRD_D + 3}], s{S_TMP} offen offset:60")


FLAGS = ("dupm", "early", "wpre", "dbg", "xcontig", "xmaj", "nomfma", "zmfma", "contig", "stamps", "nost", "nold", "clk", "itst")


def ints(s):
    return [int(x) for x in s.split(",")]


def parse(argv):
    p = argparse.ArgumentParser()
    p.add_argument("-o", default="-")
    p.add_argument("--R", type=int, default=7)
    p.add_argument("--D", type=int, default=3)
    p.add_argument("--ld", default="nt")
    p.add_argument("--st", default="sc0 sc1")
    p.add_argument("--wf", default="")
    p.add_argument("--groups", default="2:0,0,0,0,0,0,0,1,0,0,0,0")
    p.add_argument("--gbit", type=int, default=3)
    p.add_argument("--xlate", type=int, default=8)
    p.add_argument("--wgap", type=int, default=2)
    p.add_argument("--nb", type=int, default=4)
    p.add_argument("--xblk", type=int, default=0)
    p.add_argument("--dn", type=int, default=0)
    p.add_argument("--cnt", type=ints, default=None)
    p.add_argument("--tlbpf", type=int, default=0)
    p.add_argument("--ksw", type=int, default=None)
    p.add_argument("--st1", default="")
    p.add_argument("--wrot", type=int, default=0)
    p.add_argument("--lorder", default="d0,d1,d2,s0,s1,s2")
    p.add_argument("--lpos", type=ints, default=None)
    p.add_argument("--lbase", type=int, default=1)
    p.add_argument("--lstep", type=int, default=12)
    p.add_argument("--lstag", type=int, default=0)
    p.add_argument("--gapcap", type=int, default=4)
    p.add_argument("--rbdist", type=int, default=10)
    p.add_argument("--cpos", type=int, default=8)
    p.add_argument("--cstep", type=int, default=8)
    p.add_argument("--swcost", type=int, default=4)
    p.add_argument("--xstep", type=int, default=5)
    p.add_argument("--skip", default="")
    for f in FLAGS:
        p.add_argument("--" + f, action="store_true")
    o = p.parse_args(argv)
    gs = []
    for g in o.groups.split("/"):
        f = g.split(":")
        gs.append((int(f[0]), ints(f[1]) if len(f) > 1 else [0] * 12))
    o.groups = gs
    o.lorder = o.lorder.split(",")
    o.skip = set(o.skip.split(",")) if o.skip else set()
    return o


if __name__ == "__main__":
    o = parse(sys.argv[1:])
    text = Gen(o).build()
    if o.o == "-":
        sys.stdout.write(text)
    else:
        open(o.o, "w").write(text)
```
